```python
import torch

def _softmax(x, axis=-1):
    return torch.softmax(x, dim=axis)
def _gelu(x):
    return torch.nn.functional.gelu(x, approximate="tanh")
def _silu(x):
    return torch.nn.functional.silu(x)
def _sigmoid(x):
    return torch.sigmoid(x)
def _layernorm(x, axis=-1, eps=1e-5):
    m = x.mean(dim=axis, keepdim=True)
    v = x.var(dim=axis, keepdim=True, unbiased=False)
    return (x - m) / torch.sqrt(v + eps)
def _scatter_add(tgt, idx, src, axis=0):
    return tgt.clone().index_add_(axis, idx, src)
def _segment_sum(src, seg, n):
    out = torch.zeros((n,) + src.shape[1:], dtype=src.dtype)
    return out.index_add_(0, seg, src)
def _pad(x, pw):
    flat = tuple(v for pair in reversed(pw) for v in pair)
    return torch.nn.functional.pad(x, flat)

kernel_name = 'standalone__mha_block_cached__near_ridge'

def setup_inputs():

    _w = (lambda a: (lambda t: t.to(torch.bfloat16) if t.is_floating_point() else t)(torch.as_tensor(a)))
    B, Sq, D = 8, 192, 576
    H, Sk, Dh = 32, 512, 128
    return {
        "x": _w((lambda *s: torch.randn(*s, dtype=torch.bfloat16) * 0.8)(B, Sq, D)),
        "k_cache": _w((lambda *s: torch.randn(*s, dtype=torch.bfloat16) * 0.8)(B, H, Sk, Dh)),
        "v_cache": _w((lambda *s: torch.randn(*s, dtype=torch.bfloat16) * 0.05)(B, H, Sk, Dh)),
        "wq": _w((lambda *s: torch.randn(*s, dtype=torch.bfloat16) * 0.8)(D, H * Dh) * (D ** -0.5)),
        "wo": _w((lambda *s: torch.randn(*s, dtype=torch.bfloat16) * 0.05)(H * Dh, D) * ((H * Dh) ** -0.5)),
    }

def reference(x, k_cache, v_cache, wq, wo):
    B, Sq, D = x.shape
    H, Dh = 32, 128
    q = (lambda x, *d: x.permute(*d))((x @ wq).reshape(B, Sq, H, Dh), 0, 2, 1, 3)
    scores = torch.einsum("bhqd,bhkd->bhqk", q, k_cache) * (Dh ** -0.5)
    p = _softmax(scores, axis=-1)
    o = torch.einsum("bhqk,bhkd->bhqd", p, v_cache)
    return (lambda x, *d: x.permute(*d))(o, 0, 2, 1, 3).reshape(B, Sq, H * Dh) @ wo
```

```python
class Asm:
    def __init__(self):
        self.lines = []
        self._lbl = 0
    def __call__(self, s):
        for l in s.split('\n'):
            l = l.rstrip()
            if l.strip():
                self.lines.append('    ' + l.strip() if not l.strip().endswith(':') else l.strip())
    def label(self, name):
        self.lines.append(name + ':')
    def newlabel(self, p='L'):
        self._lbl += 1
        return f'{p}_{self._lbl}'
    def comment(self, s):
        self.lines.append('    ; ' + s)
    def text(self):
        return '\n'.join(self.lines) + '\n'

HEADER = '''; Kernarg layout for this problem (64 bytes, ptrs only, base s[0:1]):
'''

def kernel_desc(name, vgpr, sgpr=102, accum=None):
    if accum is None:
        accum = (vgpr + 3) // 4 * 4
        if accum > 256: accum = 256
    return f'''.p2align 6
.amdhsa_kernel {name}
  .amdhsa_next_free_vgpr {vgpr}
  .amdhsa_next_free_sgpr {sgpr}
  .amdhsa_accum_offset {accum}
  .amdhsa_group_segment_fixed_size 0
  .amdhsa_kernarg_size 64
  .amdhsa_user_sgpr_count 2
  .amdhsa_user_sgpr_kernarg_segment_ptr 1
  .amdhsa_system_sgpr_workgroup_id_x 1
.end_amdhsa_kernel
'''

def build_file(kernels):
    out = HEADER
    if len(kernels) == 1 and kernels[0].get('single'):
        k = kernels[0]
        out += f"; @launch grid=({k['grid']},1,1) block=({k['block']},1,1) lds={k['lds']}\n"
    else:
        for k in kernels:
            out += f"; @launch kernel={k['name']} grid=({k['grid']},1,1) block=({k['block']},1,1) lds={k['lds']}\n"
    out += '.amdgcn_target "amdgcn-amd-amdhsa--gfx950"\n.text\n'
    for k in kernels:
        out += f".globl {k['name']}\n.p2align 8\n.type {k['name']},@function\n{k['name']}:\n"
        out += k['body']
    out += '.section .rodata,"a"\n'
    for k in kernels:
        out += kernel_desc(k['name'], k['vgpr'], k.get('sgpr', 102), k.get('accum'))
    return out

def srd(a, d, base, nbytes):
    a(f's_mov_b32 s{d}, s{base}')
    a(f's_mov_b32 s{d+1}, s{base+1}')
    a(f's_mov_b32 s{d+2}, {nbytes:#x}')
    a(f's_mov_b32 s{d+3}, 0x00020000')
```

```python
import sys, math, struct
from asmlib import *
import hazard

def f32bits(x): return struct.unpack('<I', struct.pack('<f', x))[0]
U = 16384
BUF0 = 81920; BUFSZ = 40960
SCALE = 128 ** -0.5 * math.log2(math.e)
THR = 2.0 ** 24
STAMP_OFF = 200 << 20
NAME = 'standalone__mha_block_cached__near_ridge'

def vr(b, n=4): return f'v[{b}:{b+n-1}]'

def O_(qt, v): return (qt*8 + v)*4
def Q_(qt, u): return 96 + (qt*4+u)*4
def S_(qt, T): return 144 + (qt*2+T)*4
def S0_(qt, T): return (qt*2+T)*4
def P_(pb, qt): return 168 + (pb*3+qt)*4
RING = 192; RN = 6
def MN(qt): return 216 + qt*4
def L_(qt): return 228 + qt
def LB(qt): return 231 + qt
AK = 234; AV = 238; VK = 246; VV = 247; TMP = 248
def XF(bs, qt, ks): return ((bs*3+qt)*2+ks)*4
def WF(bs, tile, ks): return 48 + ((bs*4+tile)*2+ks)*4
def QA(qt, tile): return 144 + (qt*4+tile)*4
AX = 192; AW = 194; VX = 198; VW = 199; VXB = 200; VWB = 201; AQW = 202; AQR = 203; VLANE16 = 204
SX, SK, SV, SWQ, SWS = 20, 24, 28, 32, 36
sW, sQG, sB, sH, sC, sM1, sM2 = 40, 41, 42, 43, 44, 45, 46
sXO = 47
sWO = 52
sT, sXOFF, sWOFF, sTHR, sSCALE, sRET = 56, 57, 58, 59, 60, 61
sODD = 62
sOB = 64
sST = 70

KUNIT = [0, 1, 3, 8, 5, 7, 1, 3]
VUNIT = [2, 4, 9, 6, 0, 2, 4, 8]
ITEMS = [('K',0), ('K',1)]
for j in range(7): ITEMS += [('V', j)] + ([('K', j+2)] if j+2 < 8 else [])
ITEMS += [('V', 7)]
assert len(ITEMS) == 16

class Cfg:
    stamps = False
    nfirst = 10
    rpos = 14
    kv_nt = False
    dumpq = False
    sites = ['start','karg','dma','L0','R0','L1','L2','L4','L6','L8','p1end','X1','B1','end']
    swave = 0

class VM:
    def __init__(s): s.q = []
    def issue(s, tag): s.q.append(tag)
    def need(s, pred):
        last = -1
        for i, t in enumerate(s.q):
            if pred(t): last = i
        n = len(s.q) - 1 - last
        return n if last >= 0 else None

def stamp(a, cfg, name):
    if not cfg.stamps: return
    if name == 'start': a(f's_memrealtime s[{sST}:{sST+1}]')
    if name == 'end': a(f's_memrealtime s[{sST+2}:{sST+3}]')
    if name in cfg.sites:
        i = 2 + cfg.sites.index(name)
        a(f's_memtime s[{sST+2*i}:{sST+2*i+1}]')

def kv_dma(kind, j, half, cfg):
    unit = KUNIT[j] if kind == 'K' else VUNIT[j]
    srd = SK if kind == 'K' else SV
    v = VK if kind == 'K' else VV
    nt = ' nt' if cfg.kv_nt else ''
    return [[f's_add_u32 m0, s{sM2}, {unit*U + half*8192}', f's_mov_b32 s{sT}, {j*16384 + half*8192}',
             f'buffer_load_dwordx4 v{v}, s[{srd}:{srd+3}], s{sT} offen{nt} lds'],
            [f'buffer_load_dwordx4 v{v}, s[{srd}:{srd+3}], s{sT} offen offset:1024{nt} lds']]

def xw_dma(bufi):
    base = BUF0 + bufi*BUFSZ
    out = []
    order = [('x',0),('w',0),('x',1),('w',1),('x',2),('x',3),('w',2),('x',4),('w',3),('x',5)]
    for k, i in order:
        if k == 'x':
            so = '0' if i == 0 else f's{sXO+i}'
            out.append([f's_add_u32 m0, s{sM1}, {base + i*4096}', 's_nop 0', f'buffer_load_dwordx4 v{VX}, s[{SX}:{SX+3}], {so} offen lds'])
        else:
            so = '0' if i == 0 else f's{sWO+i}'
            out.append([f's_add_u32 m0, s{sM1}, {base + 24576 + i*4096}', 's_nop 0', f'buffer_load_dwordx4 v{VW}, s[{SWQ}:{SWQ+3}], {so} offen lds'])
    return out

def next_chunk():
    return [f's_add_u32 s{sC}, s{sC}, 1', f's_cmp_eq_u32 s{sC}, 9', f's_cselect_b32 s{sC}, 0, s{sC}',
            f's_lshl_b32 s{sXOFF}, s{sC}, 7', f's_lshl_b32 s{sWOFF}, s{sC}, 19',
            f'v_add_u32 v{VX}, s{sXOFF}, v{VXB}', f'v_add_u32 v{VW}, s{sWOFF}, v{VWB}']

def spread(n_items, n_slots):
    out = []; done = 0
    for s in range(n_slots):
        tgt = (s+1)*n_items // n_slots
        out.append(tgt - done); done = tgt
    return out

def sm_list(Sreg, pb, add_mn, inplace_add=True):
    groups = [(qt, T) for T in (0, 1) for qt in range(3)]
    def exps(k):
        qt, T = groups[k]; t = TMP + 4*(k & 1); s = Sreg(qt, T)
        l = []
        for r in range(4):
            g = []
            if add_mn: g.append(f'v_add_f32 v{s+r}, v{MN(qt)}, v{s+r}')
            g.append(f'v_exp_f32 v{t+r}, v{s+r}')
            l.append(g)
        return l
    def post(k):
        qt, T = groups[k]; t = TMP + 4*(k & 1); p = P_(pb, qt) + 2*T
        if T == 0:
            adds = [None, f'v_add_f32 v{LB(qt)}, v{t}, v{t+1}', f'v_add_f32 v{LB(qt)}, v{LB(qt)}, v{t+2}', f'v_add_f32 v{LB(qt)}, v{LB(qt)}, v{t+3}']
        else:
            adds = [f'v_add_f32 v{LB(qt)}, v{LB(qt)}, v{t+r}' for r in range(4)]
        cv = [f'v_cvt_pk_bf16_f32 v{p}, v{t}, v{t+1}', f'v_cvt_pk_bf16_f32 v{p+1}, v{t+2}, v{t+3}']
        return adds, cv
    out = []
    marks = {}
    for k in range(7):
        e = exps(k) if k < 6 else [[], [], [], []]
        if k > 0: ad, cv = post(k-1)
        else: ad, cv = [None]*4, [None, None]
        marks[k] = len(out)
        if add_mn and k < 6:
            seq = [e[0][0], e[1][0], ad[0], e[0][1], e[2][0], ad[1], e[1][1], e[3][0], cv[0], e[2][1], ad[2], e[3][1], ad[3], cv[1]]
        elif k < 6:
            seq = [e[0][0], ad[0], e[1][0], ad[1], cv[0], e[2][0], ad[2], e[3][0], ad[3], cv[1]]
        else:
            seq = [ad[0], ad[1], cv[0], ad[2], cv[1], ad[3]]
        out += [x for x in seq if x]
    return out, marks

def xreduce(op, regs, tmps):
    out = []
    for sw in ('v_permlane16_swap_b32', 'v_permlane32_swap_b32'):
        for r, t in zip(regs, tmps): out.append(f'v_mov_b32 v{t}, v{r}')
        out.append('s_nop 1')
        for r, t in zip(regs, tmps): out.append(f'{sw} v{r}, v{t}')
        out.append('s_nop 0')
        for r, t in zip(regs, tmps): out.append(f'{op} v{r}, v{r}, v{t}')
    return out

def max8(dst, s0, s1):
    return [f'v_max3_f32 v{dst}, v{s0}, v{s0+1}, v{s0+2}', f'v_max3_f32 v{dst}, v{dst}, v{s0+3}, v{s1}',
            f'v_max3_f32 v{dst}, v{dst}, v{s1+1}, v{s1+2}', f'v_max_f32 v{dst}, v{dst}, v{s1+3}']

def role_code(a, kg, cfg):
    vm = VM()
    R = 'A' if kg == 0 else 'B'
    lane = TMP + 7
    t0, t1, t2, t3 = TMP, TMP+1, TMP+2, TMP+3
    if kg == 0:
        a(f'v_lshrrev_b32 v{t0}, 3, v{lane}')
        a(f's_lshl_b32 s{sT}, s{sQG}, 3')
        a(f'v_add_u32 v{t1}, s{sT}, v{t0}')
        a(f'v_mul_u32_u24 v{t1}, 1152, v{t1}')
        a(f'v_lshrrev_b32 v{t2}, 4, v{lane}')
        a(f's_and_b32 s{sT}, s{sQG}, 1'); a(f's_lshl_b32 s{sT}, s{sT}, 2')
        a(f'v_or_b32 v{t3}, s{sT}, v{t2}')
        a(f'v_and_b32 v{t0}, 7, v{lane}')
        a(f'v_xor_b32 v{t0}, v{t0}, v{t3}')
        a(f'v_lshl_add_u32 v{VXB}, v{t0}, 4, v{t1}')
        a(f's_lshl_b32 s{sT}, s{sQG}, 2')
        a(f'v_add_u32 v{t1}, s{sT}, v{t2}')
        a(f'v_lshlrev_b32 v{t1}, 13, v{t1}')
        a(f'v_and_b32 v{t0}, 1, v{t2}')
        a(f'v_lshrrev_b32 v{t3}, 5, v{lane}')
        a(f'v_lshl_or_b32 v{t0}, v{t3}, 2, v{t0}')
        a(f's_lshr_b32 s{sT}, s{sQG}, 1'); a(f's_lshl_b32 s{sT}, s{sT}, 3')
        a(f'v_or_b32 v{t0}, s{sT}, v{t0}')
        a(f'v_and_b32 v{t3}, 15, v{lane}')
        a(f'v_xor_b32 v{t0}, v{t0}, v{t3}')
        a(f'v_lshl_add_u32 v{VWB}, v{t0}, 4, v{t1}')
        a(f's_lshl_b32 s{sXOFF}, s{sC}, 7'); a(f's_lshl_b32 s{sWOFF}, s{sC}, 19')
        a(f'v_add_u32 v{VX}, s{sXOFF}, v{VXB}'); a(f'v_add_u32 v{VW}, s{sWOFF}, v{VWB}')
        for i in range(1, 6): a(f's_mov_b32 s{sXO+i}, {i*36864}')
        for i in range(1, 4): a(f's_mov_b32 s{sWO+i}, {i*131072}')
        a('s_waitcnt lgkmcnt(0)')
        stamp(a, cfg, 'karg')
        build_srds(a)
        for c in range(2):
            for g in xw_dma(c):
                for x in g: a(x)
                vm.issue(('c', c))
            for x in next_chunk(): a(x)
    def kv_voff():
        a(f'v_lshrrev_b32 v{t2}, 4, v{lane}')
        a(f'v_and_b32 v{t3}, 15, v{lane}')
        a(f'v_lshlrev_b32 v{t1}, 8, v{t2}')
        a(f'v_add_u32 v{t1}, s{sM2}, v{t1}')
        a(f's_lshl_b32 s{sT}, s{sQG}, 2')
        a(f'v_or_b32 v{t0}, s{sT}, v{t2}')
        a(f'v_xor_b32 v{t0}, v{t0}, v{t3}')
        a(f'v_lshl_add_u32 v{VK}, v{t0}, 4, v{t1}')
        a(f's_and_b32 s{sT}, s{sQG}, 1'); a(f's_lshl_b32 s{sT}, s{sT}, 2')
        a(f'v_or_b32 v{t0}, s{sT}, v{t2}')
        a(f'v_lshlrev_b32 v{t0}, 1, v{t0}')
        a(f'v_xor_b32 v{t0}, v{t0}, v{t3}')
        a(f'v_lshl_add_u32 v{VV}, v{t0}, 4, v{t1}')
    kv_voff()
    if kg == 1:
        a('s_waitcnt lgkmcnt(0)')
        stamp(a, cfg, 'karg')
        build_srds(a)
        for it in range(5):
            kind, j = ITEMS[it]
            for half in (0, 1):
                for g in kv_dma(kind, j, half, cfg):
                    for x in g: a(x)
                    vm.issue(('i', it))
    stamp(a, cfg, 'dma')
    a(f'v_and_b32 v{t0}, 15, v{lane}')
    a(f'v_lshrrev_b32 v{t2}, 4, v{lane}')
    a(f's_mul_i32 s{sT}, s{sQG}, {48*128}')
    a(f's_add_u32 s{sT}, s{sT}, {BUF0}')
    a(f'v_lshlrev_b32 v{t1}, 7, v{t0}')
    a(f'v_add_u32 v{t1}, s{sT}, v{t1}')
    a(f'v_lshrrev_b32 v{t3}, 1, v{t0}')
    a(f'v_xor_b32 v{t3}, v{t3}, v{t2}')
    a(f'v_lshl_add_u32 v{AX}, v{t3}, 4, v{t1}')
    a(f'v_xor_b32 v{AX+1}, 64, v{AX}')
    a(f'v_and_b32 v{t1}, 3, v{t0}')
    a(f'v_lshrrev_b32 v{t3}, 2, v{t0}')
    a(f'v_lshl_add_u32 v{t1}, v{t3}, 3, v{t1}')
    a(f'v_lshlrev_b32 v{t1}, 8, v{t1}')
    a(f'v_xor_b32 v{t3}, v{t0}, v{t2}')
    a(f'v_lshl_add_u32 v{t1}, v{t3}, 4, v{t1}')
    for u in range(4):
        t = u ^ (2*kg)
        a(f'v_xor_b32 v{AK+u}, {(t << 6) | (kg*8192)}, v{t1}')
    r_, c_ = TMP+4, TMP+5
    a(f'v_bfe_u32 v{r_}, v{lane}, 2, 2')
    a(f'v_and_b32 v{c_}, 3, v{lane}')
    a(f'v_lshl_add_u32 v{t1}, v{t2}, 3, v{r_}')
    a(f'v_lshlrev_b32 v{t1}, 8, v{t1}')
    a(f'v_and_b32 v{t0}, 1, v{t2}')
    a(f'v_lshl_or_b32 v{t3}, v{t0}, 2, v{r_}')
    a(f'v_lshlrev_b32 v{t3}, 5, v{t3}')
    a(f'v_lshl_or_b32 v{t3}, v{c_}, 3, v{t3}')
    a(f'v_add_u32 v{t3}, v{t3}, v{t1}')
    for v in range(8):
        jj = v ^ (4*kg)
        a(f'v_xor_b32 v{AV+v}, {(jj << 5) | (kg*8192)}, v{t3}')
    a(f'v_and_b32 v{t3}, 1, v{r_}')
    a(f'v_xor_b32 v{t3}, v{t3}, v{c_}')
    a(f'v_lshrrev_b32 v{TMP+6}, 1, v{r_}')
    a(f'v_lshl_or_b32 v{t3}, v{TMP+6}, 2, v{t3}')
    a(f'v_lshl_or_b32 v{t3}, v{t0}, 3, v{t3}')
    a(f'v_lshlrev_b32 v{t3}, 4, v{t3}')
    a(f'v_and_b32 v{TMP+6}, 1, v{c_}')
    a(f'v_lshl_or_b32 v{t3}, v{TMP+6}, 3, v{t3}')
    a(f'v_add_u32 v{t3}, v{t3}, v{t1}')
    a(f'v_add_u32 v{t3}, {BUF0+24576}, v{t3}')
    for tt in range(2):
        for T in range(2):
            a(f'v_xor_b32 v{AW+tt*2+T}, {(kg << 7) | (tt << 6) | (T << 3)}, v{t3}')
    a(f'v_cmp_eq_u32 s[{sODD}:{sODD+1}], 1, v{t0}')
    a(f'v_lshlrev_b32 v{VLANE16}, 4, v{lane}')
    a(f's_mul_i32 s{sT}, s{sQG}, 6144')
    a(f'v_add_u32 v{AQW}, s{sT}, v{VLANE16}')
    a(f'v_add_u32 v{AQR}, {BUF0 + (1-kg)*4*6144}, v{AQW}')
    a(f'v_add_u32 v{AQW}, {BUF0 + kg*4*6144}, v{AQW}')
    a(f's_mov_b32 s{sTHR}, {f32bits(THR):#x}')
    a(f's_mov_b32 s{sSCALE}, {f32bits(SCALE):#x}')

    def p1_reads(i):
        bs = i & 1; off = bs*BUFSZ
        l = []
        for ks in range(2):
            for tile in range(4):
                for hh in range(2):
                    d = WF(bs, tile, ks) + 2*hh
                    l.append(f'ds_read_b64_tr_b16 v[{d}:{d+1}], v{AW+tile} offset:{off + ks*8192 + hh*1024}')
                if tile < 3:
                    l.append(f'ds_read_b128 {vr(XF(bs, tile, ks))}, v{AX+ks} offset:{off + tile*2048}')
        return l
    def p1_mfma(i):
        bs = i & 1
        l = []
        for ks in range(2):
            for tile in range(4):
                for qt in range(3):
                    c = '0' if (i == 0 and ks == 0) else vr(QA(qt, tile))
                    l.append(f'v_mfma_f32_16x16x32_bf16 {vr(QA(qt, tile))}, {vr(WF(bs, tile, ks))}, {vr(XF(bs, qt, ks))}, {c}')
        return l
    pend = []
    def emit_groups(mf, groups):
        n = len(mf)
        if n == 0:
            for tag, g in groups:
                for x in g: a(x)
                if tag: vm.issue(tag)
            return
        cnt = spread(len(groups), n)
        gi = 0
        for k in range(n):
            for _ in range(cnt[k]):
                tag, g = groups[gi]; gi += 1
                for x in g: a(x)
                if tag: vm.issue(tag)
            a(mf[k])
    for i in range(9):
        if kg == 0:
            n = vm.need(lambda t: t == ('c', i))
            a(f's_waitcnt vmcnt({n})')
        a('s_barrier')
        stamp(a, cfg, f'L{i}')
        mf = p1_mfma(i-1) if i > 0 else []
        rp = cfg.rpos if i > 0 else 0
        rd = [(None, [x]) for x in p1_reads(i)]
        g1 = []
        npend = len(pend)
        cnt = spread(npend, len(rd))
        for k, r in enumerate(rd):
            g1.append(r)
            for _ in range(cnt[k]): g1.append(pend.pop(0))
        emit_groups(mf[:max(rp-3, 0)], g1)
        for x in mf[max(rp-3, 0):rp]: a(x)
        a('s_waitcnt lgkmcnt(0)')
        stamp(a, cfg, f'r{i}')
        a('s_barrier')
        stamp(a, cfg, f'R{i}')
        g2 = []
        if kg == 0 and i + 2 <= 8:
            d = [(('c', i+2), g) for g in xw_dma(i & 1)]
            d[-1] = (d[-1][0], d[-1][1] + next_chunk())
            g2 = d[:cfg.nfirst]; pend = d[cfg.nfirst:]
        if i == 7:
            for it in (5, 6):
                kind, j = ITEMS[it]
                g2 += [(('i', it), g) for g in kv_dma(kind, j, kg, cfg)]
        emit_groups(mf[rp:], g2)
    assert not pend
    for x in p1_mfma(8): a(x)
    stamp(a, cfg, 'p1end')
    a('s_nop 4')
    for qt in range(3):
        for tt in range(2):
            s0, s1 = QA(qt, tt*2), QA(qt, tt*2+1)
            for r in range(8): a(f'v_mul_f32 v{s0+r}, s{sSCALE}, v{s0+r}')
            a(f'v_cvt_pk_bf16_f32 v{t0}, v{s0}, v{s0+1}')
            a(f'v_cvt_pk_bf16_f32 v{t1}, v{s0+2}, v{s0+3}')
            a(f'v_cvt_pk_bf16_f32 v{t2}, v{s1}, v{s1+1}')
            a(f'v_cvt_pk_bf16_f32 v{t3}, v{s1+2}, v{s1+3}')
            q = Q_(qt, tt)
            m = f's[{sODD}:{sODD+1}]'
            a(f'v_cndmask_b32 v{q}, v{t0}, v{t2}, {m}')
            a(f'v_cndmask_b32 v{q+1}, v{t1}, v{t3}, {m}')
            a(f'v_cndmask_b32 v{q+2}, v{t2}, v{t0}, {m}')
            a(f'v_cndmask_b32 v{q+3}, v{t3}, v{t1}, {m}')
            a(f'ds_write_b128 v{AQW}, {vr(q)} offset:{(qt*2+tt)*1024}')
    a(f'v_mov_b32 v{LB(2)}, v{AQR}')
    n = vm.need(lambda t: t == ('i', 0))
    a('s_waitcnt lgkmcnt(0)' + (f' vmcnt({n})' if n is not None else ''))
    a('s_barrier')
    stamp(a, cfg, 'X1')

    frs = []
    for it, (kind, j) in enumerate(ITEMS):
        if kind == 'K':
            order = [(T, u) for u in range(4) for T in range(2)] if j == 0 else [(T, u) for T in range(2) for u in range(4)]
        else:
            order = [4, 5, 6, 7, 0, 1, 2, 3] if j == 7 else list(range(8))
        for o in order: frs.append((it, kind, j, o))
    NF = len(frs)
    lq = []
    cur = {'K': 0, 'V': 0}
    def load_frag(f):
        it, kind, j, o = frs[f]
        unit = KUNIT[j] if kind == 'K' else VUNIT[j]
        base = unit*U
        if not (0 <= base - cur[kind] <= 49152):
            seq = (KUNIT if kind == 'K' else VUNIT)[j:]
            best = None
            for nb in range(max(unit-3, 0), unit+1):
                cntc = 0
                for x in seq:
                    if nb <= x <= nb+3: cntc += 1
                    else: break
                if best is None or cntc > best[0]: best = (cntc, nb)
            nb = best[1]*U
            d = nb - cur[kind]
            regs = range(AK, AK+4) if kind == 'K' else range(AV, AV+8)
            for rg in regs:
                if d > 0: a(f'v_add_u32 v{rg}, {d}, v{rg}')
                else: a(f'v_subrev_u32 v{rg}, {-d}, v{rg}')
            cur[kind] = nb
        off = base - cur[kind]
        d = RING + 4*(f % RN)
        if kind == 'K':
            T, u = o
            a(f'ds_read_b128 {vr(d)}, v{AK+u} offset:{off + T*1024}'); lq.append(('f', f))
        else:
            a(f'ds_read_b64_tr_b16 v[{d}:{d+1}], v{AV+o} offset:{off}'); lq.append(('f', f))
            a(f'ds_read_b64_tr_b16 v[{d+2}:{d+3}], v{AV+o} offset:{off+1024}'); lq.append(('f', f))
    done_upto = [-1]
    def lwait(pred):
        last = -1
        for i, t in enumerate(lq):
            if pred(t): last = i
        if last <= done_upto[0]: return
        n = min(len(lq) - 1 - last, 15)
        a(f's_waitcnt lgkmcnt({n})')
        done_upto[0] = len(lq) - 1 - n
    NM = NF*3
    fill = [[] for _ in range(NM)]
    def place(instrs, lo, hi):
        cnt = spread(len(instrs), hi - lo + 1)
        k = 0
        for s, c in enumerate(cnt):
            fill[lo+s] += instrs[k:k+c]; k += c
    post = {}
    mx = []
    for i in range(4):
        for qt in range(3): mx.append(max8(L_(qt), S0_(qt, 0), S0_(qt, 1))[i])
    mx += xreduce('v_max_f32', [L_(0), L_(1), L_(2)], [TMP, TMP+1, TMP+2])
    for r in range(4):
        for qt in range(3): mx.append(f'v_sub_f32 v{MN(qt)+r}, 0, v{L_(qt)}')
    s0, _ = sm_list(S0_, 0, True)
    s0 += [f'v_mov_b32 v{L_(qt)}, v{LB(qt)}' for qt in range(3)]
    place(mx + s0, 28, 46)
    def chk(n):
        return [f'v_max3_f32 v{TMP}, v{LB(0)}, v{LB(1)}, v{LB(2)}', f's_mov_b32 s{sRET}, {kg*8+n}', f'v_cmp_lt_f32 vcc, s{sTHR}, v{TMP}']
    def chk2(n):
        return [f's_cbranch_vccnz L_slow{n&1}', f'L_ret{kg*8+n}:'] + [f'v_add_f32 v{L_(qt)}, v{L_(qt)}, v{LB(qt)}' for qt in range(3)]
    s1, _ = sm_list(S_, 1, True)
    place(s1 + chk(1), 52, 70)
    post[71] = chk2(1)
    for n in range(2, 8):
        base = 24*(2*n-1)
        s, marks = sm_list(S_, n & 1, False)
        k3 = marks[3]
        place(s[:k3], base+16, base+28)
        place(s[k3:] + chk(n), base+29, base+46)
        post[base+47] = chk2(n)
    base = 24*15
    fin = xreduce('v_add_f32', [L_(0), L_(1), L_(2)], [TMP, TMP+1, TMP+2])
    fin += [f'v_mov_b32 v{TMP+qt}, v{MN(qt)}' for qt in range(3)] + [f'v_mov_b32 v{TMP+3+qt}, v{L_(qt)}' for qt in range(3)]
    AOW, AOR, AMW, AMR = AK, AK+1, AK+2, AK+3
    fin += [f'v_mbcnt_lo_u32_b32 v{TMP+7}, -1, 0', f'v_mbcnt_hi_u32_b32 v{TMP+7}, -1, v{TMP+7}', f'v_lshlrev_b32 v{VK}, 4, v{TMP+7}',
            f's_mul_i32 s{sT}, s{sQG}, 12288', f'v_add_u32 v{AOW}, s{sT}, v{VK}',
            f'v_add_u32 v{AOR}, {(1-kg)*49152}, v{AOW}', f'v_add_u32 v{AOW}, {kg*49152}, v{AOW}',
            f'v_lshl_add_u32 v{AMW}, v{VK}, 1, s{sM2}', f'v_add_u32 v{AMR}, {6*U + (1-kg)*8192}, v{AMW}', f'v_add_u32 v{AMW}, {6*U + kg*8192}, v{AMW}']
    place(fin, base+1, base+10)
    wr = [('L', f'ds_write_b128 v{AMW}, v[{TMP}:{TMP+3}]'), ('L', f'ds_write_b64 v{AMW}, v[{TMP+4}:{TMP+5}] offset:16')]
    place(wr, base+12, base+13)
    wr = [('L', f'ds_write_b128 v{AOW}, {vr(O_(qt, v))} offset:{((v-4)*3+qt)*1024}') for v in range(4, 8) for qt in range(3)]
    place(wr[:9], base+14, base+22)
    tailw = wr[9:]

    D = 1
    bar_at = {}
    for k in [1, 3, 5, 7, 9, 11, 13, 15]:
        bar_at[8*k - (RN-1) + D] = k
    dma_after = {1: [7, 8, 9, 10], 3: [11, 12], 5: [13, 14], 7: [15]}
    allowed = 8
    nl = 0
    load_frag(0); load_frag(1); nl = 2
    for qt in range(3):
        for tt in range(2):
            a(f'ds_read_b128 {vr(Q_(qt, 2+tt))}, v{LB(2)} offset:{(qt*2+tt)*1024}'); lq.append(('q', tt))
    while nl < RN - 1: load_frag(nl); nl += 1
    for f in range(NF):
        it, kind, j, o = frs[f]
        if f in bar_at:
            k = bar_at[f]
            need_items = [k, k+1] if k < 15 else [15]
            n = vm.need(lambda t: t[0] == 'i' and t[1] in need_items)
            stamp(a, cfg, f'a{k}')
            a('s_waitcnt lgkmcnt(0)' + (f' vmcnt({n})' if n is not None else ''))
            done_upto[0] = len(lq) - 1
            stamp(a, cfg, f'b{k}')
            a('s_barrier')
            stamp(a, cfg, f'B{k}')
            allowed = 8*(k+2)
            gl = []
            for it2 in dma_after.get(k, []):
                kind2, j2 = ITEMS[it2]
                for g in kv_dma(kind2, j2, kg, cfg): gl.append(('D', it2, g))
            if gl: place(gl, 3*f+1, 3*f+1+2*len(gl))
        while nl < min(f + RN, NF, allowed): load_frag(nl); nl += 1
        lwait(lambda t: t == ('f', f))
        if kind == 'K' and j == 0 and o[1] >= 2: lwait(lambda t: t[0] == 'q')
        d = RING + 4*(f % RN)
        for qt in range(3):
            if kind == 'K':
                T, u = o
                acc = S0_(qt, T) if j == 0 else S_(qt, T)
                c = vr(acc) if u > 0 else ('0' if j <= 1 else vr(MN(qt)))
                a(f'v_mfma_f32_16x16x32_bf16 {vr(acc)}, {vr(d)}, {vr(Q_(qt, u))}, {c}')
            else:
                acc = O_(qt, o)
                c = '0' if j == 0 else vr(acc)
                a(f'v_mfma_f32_16x16x32_bf16 {vr(acc)}, {vr(d)}, {vr(P_(j & 1, qt))}, {c}')
            mi = 3*f + qt
            for x in fill[mi]:
                if isinstance(x, tuple):
                    if x[0] == 'L': a(x[1]); lq.append(('w',))
                    else:
                        for y in x[2]: a(y)
                        vm.issue(('i', x[1]))
                else: a(x)
            for x in post.get(mi, []): a(x)
    for x in tailw: a(x[1])
    stamp(a, cfg, 'pvend')
    a('s_waitcnt lgkmcnt(0)')
    a('s_barrier')
    RM = RING
    a(f'ds_read_b128 v[{RM}:{RM+3}], v{AMR}')
    a(f'ds_read_b64 v[{RM+4}:{RM+5}], v{AMR} offset:16')
    def RC(qt, v): return 144 + (v*3+qt)*4
    for v in range(4):
        for qt in range(3): a(f'ds_read_b128 {vr(RC(qt, v))}, v{AOR} offset:{(v*3+qt)*1024}')
    a(f's_mul_i32 s{sOB}, s{sB}, 12'); a(f's_mul_i32 s{sT}, s{sQG}, 3'); a(f's_add_u32 s{sOB}, s{sOB}, s{sT}')
    a(f's_lshl_b32 s{sOB}, s{sOB}, 5'); a(f's_add_u32 s{sOB}, s{sOB}, s{sH}'); a(f's_lshl_b32 s{sOB}, s{sOB}, 12')
    a(f's_add_u32 s{sOB}, s{sOB}, {kg*2048}'); a(f's_add_u32 s{sOB+1}, s{sOB}, 131072'); a(f's_add_u32 s{sOB+2}, s{sOB}, 262144')
    a('s_waitcnt lgkmcnt(12)')
    FA, FB, NM_ = RM+8, RM+11, RM+14
    for qt in range(3): a(f'v_min_f32 v{NM_+qt}, v{MN(qt)}, v{RM+qt}')
    for qt in range(3): a(f'v_sub_f32 v{FA+qt}, v{NM_+qt}, v{MN(qt)}')
    for qt in range(3): a(f'v_sub_f32 v{FB+qt}, v{NM_+qt}, v{RM+qt}')
    for qt in range(3): a(f'v_exp_f32 v{FA+qt}, v{FA+qt}')
    for qt in range(3): a(f'v_exp_f32 v{FB+qt}, v{FB+qt}')
    for qt in range(3): a(f'v_mul_f32 v{NM_+qt}, v{L_(qt)}, v{FA+qt}')
    for qt in range(3): a(f'v_fmac_f32 v{NM_+qt}, v{RM+3+qt}, v{FB+qt}')
    for qt in range(3): a(f'v_rcp_f32 v{NM_+qt}, v{NM_+qt}')
    a('s_nop 0')
    for qt in range(3): a(f'v_mul_f32 v{FA+qt}, v{FA+qt}, v{NM_+qt}')
    for qt in range(3): a(f'v_mul_f32 v{FB+qt}, v{FB+qt}, v{NM_+qt}')
    for v in range(4):
        for qt in range(3):
            for r in range(4): a(f'v_mul_f32 v{O_(qt, v)+r}, v{O_(qt, v)+r}, v{FA+qt}')
    for uu in range(2):
        a(f's_waitcnt lgkmcnt({6 - 6*uu})')
        for qt in range(3):
            for v in (2*uu, 2*uu+1):
                for r in range(4): a(f'v_fmac_f32 v{O_(qt, v)+r}, v{RC(qt, v)+r}, v{FB+qt}')
            d = Q_(qt, uu)
            o0, o1 = O_(qt, 2*uu), O_(qt, 2*uu+1)
            a(f'v_cvt_pk_bf16_f32 v{d}, v{o0}, v{o0+1}'); a(f'v_cvt_pk_bf16_f32 v{d+1}, v{o0+2}, v{o0+3}')
            a(f'v_cvt_pk_bf16_f32 v{d+2}, v{o1}, v{o1+1}'); a(f'v_cvt_pk_bf16_f32 v{d+3}, v{o1+2}, v{o1+3}')
            a(f'buffer_store_dwordx4 {vr(d)}, v{VK}, s[{SWS}:{SWS+3}], s{sOB+qt} offen offset:{uu*1024}')
    if cfg.stamps:
        a('s_waitcnt vmcnt(0)')
        stamp(a, cfg, 'end')
        if True:
            a('s_waitcnt lgkmcnt(0)')
            a(f's_cmp_eq_u32 s{sW}, {cfg.swave}'); a('s_cbranch_scc0 L_endA')
            for i in range(32): a(f'v_mov_b32 v{i}, s{sST+i}')
            a(f's_mul_i32 s{sT}, s2, 128'); a(f's_add_u32 s{sT}, s{sT}, {STAMP_OFF}')
            a(f'v_mov_b32 v{TMP}, 0')
            a(f'v_cmp_eq_u32 vcc, 0, v{VK}'); a('s_nop 1'); a('s_and_saveexec_b64 s[66:67], vcc')
            for i in range(8): a(f'buffer_store_dwordx4 v[{4*i}:{4*i+3}], v{TMP}, s[{SWS}:{SWS+3}], s{sT} offen offset:{16*i}')
    a('s_endpgm')

def build_srds(a):
    a(f's_mul_i32 s{sT}, s{sB}, 221184')
    a(f's_add_u32 s{SX}, s4, s{sT}'); a(f's_addc_u32 s{SX+1}, s5, 0'); a(f's_mov_b32 s{SX+2}, 221184'); a(f's_mov_b32 s{SX+3}, 0x00020000')
    a(f's_lshl_b32 s{sT}, s{sH}, 8')
    a(f's_add_u32 s{SWQ}, s10, s{sT}'); a(f's_addc_u32 s{SWQ+1}, s11, 0'); a(f's_sub_u32 s{SWQ+2}, {576*8192}, s{sT}'); a(f's_mov_b32 s{SWQ+3}, 0x00020000')
    a(f's_lshl_b32 s{sT}, s{sB}, 5'); a(f's_add_u32 s{sT}, s{sT}, s{sH}'); a(f's_lshl_b32 s{sT}, s{sT}, 17')
    a(f's_add_u32 s{SK}, s6, s{sT}'); a(f's_addc_u32 s{SK+1}, s7, 0'); a(f's_mov_b32 s{SK+2}, 131072'); a(f's_mov_b32 s{SK+3}, 0x00020000')
    a(f's_add_u32 s{SV}, s8, s{sT}'); a(f's_addc_u32 s{SV+1}, s9, 0'); a(f's_mov_b32 s{SV+2}, 131072'); a(f's_mov_b32 s{SV+3}, 0x00020000')
    srd(a, SWS, 18, 268435456)

def slow_path(a, pb):
    a.label(f'L_slow{pb}')
    a('s_nop 7')
    D_ = [LB(0), LB(1), LB(2)]
    for qt in range(3):
        for x in max8(D_[qt], S_(qt, 0), S_(qt, 1)): a(x)
    for x in xreduce('v_max_f32', D_, [TMP, TMP+1, TMP+2]): a(x)
    for qt in range(3): a(f'v_max_f32 v{D_[qt]}, 0, v{D_[qt]}')
    for qt in range(3): a(f'v_exp_f32 v{TMP+qt}, -v{D_[qt]}')
    for qt in range(3):
        for r in range(4): a(f'v_sub_f32 v{MN(qt)+r}, v{MN(qt)+r}, v{D_[qt]}')
        for r in range(8): a(f'v_sub_f32 v{S_(qt,0)+r}, v{S_(qt,0)+r}, v{D_[qt]}')
    for qt in range(3):
        a(f'v_mul_f32 v{L_(qt)}, v{L_(qt)}, v{TMP+qt}')
        for r in range(32): a(f'v_mul_f32 v{O_(qt,0)+r}, v{O_(qt,0)+r}, v{TMP+qt}')
    s, _ = sm_list(S_, pb, False)
    for x in s: a(x)
    a('s_nop 1')
    rets = [kg*8+n for kg in range(2) for n in range(1, 8) if (n & 1) == pb]
    for r in rets[:-1]:
        a(f's_cmp_eq_u32 s{sRET}, {r}'); a(f's_cbranch_scc1 L_ret{r}')
    a(f's_branch L_ret{rets[-1]}')

def kernel_a(cfg):
    a = Asm()
    a('s_cmp_ge_u32 s2, 256'); a('s_cbranch_scc1 L_endA')
    a('s_load_dwordx8 s[4:11], s[0:1], 0')
    a('s_load_dwordx8 s[12:19], s[0:1], 32')
    stamp(a, cfg, 'start')
    a('v_lshrrev_b32 v1, 6, v0')
    a(f'v_and_b32 v{TMP+7}, 63, v0')
    a(f'v_readfirstlane_b32 s{sW}, v1')
    a(f's_and_b32 s{sH}, s2, 7'); a(f's_lshl_b32 s{sH}, s{sH}, 2'); a(f's_lshr_b32 s{sT}, s2, 3'); a(f's_and_b32 s{sT}, s{sT}, 3')
    a(f's_add_u32 s{sH}, s{sH}, s{sT}')
    a(f's_lshr_b32 s{sB}, s2, 5')
    a(f's_lshl_b32 s{sC}, s{sT}, 1'); a(f's_add_u32 s{sC}, s{sC}, s{sB}'); a(f's_and_b32 s{sC}, s{sC}, 7')
    a(f's_and_b32 s{sQG}, s{sW}, 3')
    a(f's_lshl_b32 s{sM1}, s{sQG}, 10'); a(f's_lshl_b32 s{sM2}, s{sQG}, 11')
    a(f's_cmp_ge_u32 s{sW}, 4'); a('s_cbranch_scc1 L_roleB')
    role_code(a, 0, cfg)
    a.label('L_roleB')
    role_code(a, 1, cfg)
    slow_path(a, 0); slow_path(a, 1)
    a.label('L_endA')
    a('s_endpgm')
    return a.text()

def kernel_b(cfg):
    a = Asm()
    DEP = 5
    ACC = 0; OF = 64; WFb = 144; AWb = 176; VO = 180; VWo = 181; T = 184
    SWO, SOUT, SWSb = 20, 24, 28
    a('s_cmp_ge_u32 s2, 216'); a('s_cbranch_scc1 L_endB')
    a('s_load_dwordx8 s[12:19], s[0:1], 32')
    a('v_lshrrev_b32 v1, 6, v0')
    lane = T+7
    a(f'v_and_b32 v{lane}, 63, v0')
    a('v_readfirstlane_b32 s40, v1')
    a('s_and_b32 s41, s2, 7')
    a('s_lshr_b32 s42, s2, 3')
    a('s_mul_i32 s43, s42, 0x1c72'); a('s_lshr_b32 s43, s43, 16')
    a('s_mul_i32 s44, s43, 9'); a('s_sub_u32 s44, s42, s44')
    a('s_mul_i32 s45, s41, 12'); a('s_lshl_b32 s46, s43, 2'); a('s_add_u32 s45, s45, s46')
    a('s_lshl_b32 s46, s45, 17'); a('s_lshl_b32 s47, s40, 14'); a('s_add_u32 s46, s46, s47')
    a(f'v_lshlrev_b32 v{T}, 4, v{lane}')
    a(f'v_add_u32 v{VO}, s46, v{T}')
    a(f'v_lshrrev_b32 v{T+1}, 3, v{lane}')
    a('s_lshl_b32 s47, s40, 9')
    a(f'v_add_u32 v{T+2}, s47, v{T+1}')
    a(f'v_mul_u32_u24 v{T+2}, 1152, v{T+2}')
    a(f'v_and_b32 v{T+1}, 6, v{T+1}'); a(f'v_and_b32 v{T+3}, 7, v{lane}'); a(f'v_xor_b32 v{T+1}, v{T+1}, v{T+3}')
    a(f'v_lshl_add_u32 v{T+2}, v{T+1}, 4, v{T+2}')
    a('s_lshl_b32 s47, s44, 7')
    a(f'v_add_u32 v{VWo}, s47, v{T+2}')
    a(f's_mul_i32 s48, s40, {DEP*4096}')
    for i in range(1, 4): a(f's_mov_b32 s{50+i}, {i*131072}')
    a('s_waitcnt lgkmcnt(0)')
    srd(a, SWO, 12, 4096*1152); srd(a, SOUT, 14, 1536*1152); srd(a, SWSb, 18, 96*131072)
    vm = VM()
    def loads(s):
        sl = s % DEP
        g = []
        for p in range(4):
            g.append((('w', s), [f's_add_u32 m0, s48, {sl*4096 + p*1024}', f's_mov_b32 s49, {(s*4+p)*9216}', f'buffer_load_dwordx4 v{VWo}, s[{SWO}:{SWO+3}], s49 offen lds']))
        for i in range(4):
            so = '0' if i == 0 else f's{50+i}'
            o = (s % 4)*1024
            g.append((('o', s), ([f'v_add_u32 v{VO}, 4096, v{VO}'] if (i == 0 and s % 4 == 0 and s > 0) else []) + [f'buffer_load_dwordx4 {vr(OF + sl*16 + i*4)}, v{VO}, s[{SWSb}:{SWSb+3}], {so} offen offset:{o}']))
        return g
    def emit(g):
        for tag, ins in g:
            for x in ins: a(x)
            vm.issue(tag)
    for s in range(DEP): emit(loads(s))
    a(f'v_lshrrev_b32 v{T+1}, 2, v{lane}')
    a(f'v_and_b32 v{T+2}, 6, v{T+1}')
    a(f'v_lshlrev_b32 v{T+2}, 4, v{T+2}')
    a(f'v_and_b32 v{T+3}, 3, v{lane}')
    a(f'v_lshl_or_b32 v{T+2}, v{T+3}, 3, v{T+2}')
    a(f'v_lshl_add_u32 v{T+2}, v{T+1}, 7, v{T+2}')
    a(f'v_add_u32 v{T+2}, s48, v{T+2}')
    for j in range(4): a(f'v_xor_b32 v{AWb+j}, {j << 5}, v{T+2}')
    def reads(s):
        sl = s % DEP
        l = []
        for j in range(4):
            d = WFb + (s & 1)*16 + j*4
            l.append(f'ds_read_b64_tr_b16 v[{d}:{d+1}], v{AWb+j} offset:{sl*4096}')
            l.append(f'ds_read_b64_tr_b16 v[{d+2}:{d+3}], v{AWb+j} offset:{sl*4096 + 2048}')
        return l
    a(f's_waitcnt vmcnt({vm.need(lambda t: t == ("w", 0))})')
    for x in reads(0): a(x)
    for s in range(16):
        if s + 1 < 16:
            a(f's_waitcnt vmcnt({vm.need(lambda t: t == ("w", s+1))})')
            for x in reads(s+1): a(x)
            a('s_waitcnt lgkmcnt(8)')
        else:
            a('s_waitcnt vmcnt(0) lgkmcnt(0)')
        sl = s % DEP
        for i in range(4):
            for j in range(4):
                acc = ACC + (i*4+j)*4
                c = '0' if s == 0 else vr(acc)
                a(f'v_mfma_f32_16x16x32_bf16 {vr(acc)}, {vr(WFb + (s & 1)*16 + j*4)}, {vr(OF + sl*16 + i*4)}, {c}')
        if s + DEP < 16: emit(loads(s + DEP))
    a('s_barrier')
    a('s_lshl_b32 s47, s40, 14')
    a(f'v_add_u32 v{T+1}, s47, v{T}')
    a('s_nop 4')
    for t in range(16): a(f'ds_write_b128 v{T+1}, {vr(ACC + t*4)} offset:{t*1024}')
    a('s_lshl_b32 s47, s40, 11')
    a(f'v_add_u32 v{T+1}, s47, v{T}')
    a(f'v_add_u32 v{T+2}, 65536, v{T+1}')
    a('s_waitcnt lgkmcnt(0)')
    a('s_barrier')
    for tt in range(2):
        for p in range(8):
            a(f'ds_read_b128 {vr(64 + (tt*8+p)*4)}, v{T+1 + (p >> 2)} offset:{(p & 3)*16384 + tt*1024}')
    a('s_lshl_b32 s46, s45, 4'); a('s_lshr_b32 s47, s40, 1'); a('s_lshl_b32 s47, s47, 4'); a('s_add_u32 s46, s46, s47')
    a(f'v_and_b32 v{T+3}, 15, v{lane}'); a(f'v_add_u32 v{T+3}, s46, v{T+3}'); a(f'v_mul_u32_u24 v{T+3}, 1152, v{T+3}')
    a(f'v_lshrrev_b32 v{T+4}, 4, v{lane}'); a(f'v_lshl_add_u32 v{T+3}, v{T+4}, 3, v{T+3}')
    a('s_lshl_b32 s46, s44, 7'); a('s_and_b32 s47, s40, 1'); a('s_lshl_b32 s47, s47, 6'); a('s_add_u32 s46, s46, s47')
    for tt in range(2):
        a(f's_waitcnt lgkmcnt({8 - 8*tt})')
        b = 64 + tt*32
        for st in (16, 8, 4):
            for r in range(st): a(f'v_add_f32 v{b+r}, v{b+r}, v{b+st+r}')
        a(f'v_cvt_pk_bf16_f32 v{b}, v{b}, v{b+1}'); a(f'v_cvt_pk_bf16_f32 v{b+1}, v{b+2}, v{b+3}')
        a(f'buffer_store_dwordx2 v[{b}:{b+1}], v{T+3}, s[{SOUT}:{SOUT+3}], s46 offen offset:{tt*32}')
    a.label('L_endB')
    a('s_endpgm')
    return a.text()

def build(cfg):
    ka = kernel_a(cfg); kb = kernel_b(cfg)
    e = hazard.check(ka) + hazard.check(kb)
    return build_file([dict(name='attn_kernel', body=ka, grid=256, block=512, lds=163840, vgpr=256),
                       dict(name='oproj_kernel', body=kb, grid=216, block=512, lds=163840, vgpr=256)])

if __name__ == '__main__':
    cfg = Cfg()
    out = sys.argv[1]
    for kv in sys.argv[2:]:
        k, v = kv.split('=')
        setattr(cfg, k, eval(v))
    open(out, 'w').write(build(cfg))
```

```python
import re
TRANS = ('v_exp_f32','v_log_f32','v_rcp_f32','v_rsq_f32','v_sqrt_f32','v_sin_f32','v_cos_f32')
def regs(tok):
    tok = tok.strip()
    tok = tok.lstrip('-')
    m = re.fullmatch(r'(?:abs\()?([vsa])(\d+)\)?', tok)
    if m: return {(m.group(1), int(m.group(2)))}
    m = re.fullmatch(r'([vsa])\[(\d+):(\d+)\]', tok)
    if m: return {(m.group(1), i) for i in range(int(m.group(2)), int(m.group(3))+1)}
    if tok == 'vcc': return {('s','vcc')}
    if tok == 'm0': return {('s','m0')}
    if tok == 'exec': return {('s','exec')}
    return set()
class I:
    def __init__(s, text, ln):
        s.text = text; s.ln = ln
        t = text.split(';')[0].strip()
        p = t.split(None, 1)
        s.op = p[0]
        ops = []
        if len(p) > 1:
            body = re.sub(r'\s+op_sel(_hi)?:\[[^\]]*\]', '', p[1])
            ops = [o.strip() for o in body.split(',')]
            if ops:
                ops[-1] = ops[-1].split()[0] if ops[-1].split() else ''
        s.ops = ops
        op = s.op
        s.mfma = op.startswith('v_mfma')
        s.valu = op.startswith('v_') and not s.mfma
        s.trans = op.replace('_e32','').replace('_e64','') in TRANS
        s.vmem = op.startswith('buffer_') or op.startswith('global_')
        s.ds = op.startswith('ds_')
        s.salu = op.startswith('s_')
        s.lds_dma = s.vmem and ' lds' in t
        s.w = set(); s.r = set(); s.srcc = set()
        R = [regs(o) for o in ops]
        if s.mfma:
            s.w = R[0]; s.ab = R[1] | R[2]; s.srcc = R[3]; s.r = s.ab | s.srcc
        elif s.valu:
            if op.startswith('v_cmp'):
                s.w = R[0]; s.r = set().union(*R[1:])
            elif op.startswith('v_permlane') and 'swap' in op:
                s.w = R[0] | R[1]; s.r = R[0] | R[1]
            elif op.startswith('v_add_co') or op.startswith('v_addc_co'):
                s.w = R[0] | R[1]; s.r = set().union(*R[2:])
            elif op.startswith('v_fmac') :
                s.w = R[0]; s.r = set().union(*R)
            elif op == 'v_nop': pass
            else:
                s.w = R[0]; s.r = set().union(*R[1:]) if len(R) > 1 else set()
        elif s.vmem:
            if s.lds_dma:
                s.r = set().union(*R) | {('s','m0')}
            elif 'load' in op:
                s.w = R[0]; s.r = set().union(*R[1:])
            elif 'atomic' in op:
                s.r = set().union(*R)
                if 'sc0' in t: s.w = R[0]
            else:
                s.r = set().union(*R); s.store_data = R[0] if op.startswith('buffer') else R[1]
        elif s.ds:
            if 'read' in op or 'permute' in op or 'swizzle' in op:
                s.w = R[0]; s.r = set().union(*R[1:])
            else:
                s.r = set().union(*R)
        elif s.salu:
            if op.startswith('s_cmp') or op.startswith('s_cbranch') or op in ('s_waitcnt','s_barrier','s_nop','s_endpgm','s_branch','s_setprio','s_sleep'):
                s.r = set().union(*R) if R else set()
            else:
                s.w = R[0] if R else set(); s.r = set().union(*R[1:]) if len(R) > 1 else set()
        s.states = 1
        if op == 's_nop': s.states = int(ops[0], 0) + 1
def check(text, verbose=True):
    ins = []
    for ln, l in enumerate(text.split('\n')):
        t = l.split(';')[0].strip()
        if not t or t.endswith(':') or t.startswith('.'): continue
        ins.append(I(t, ln+1))
    errs = []
    for i, c in enumerate(ins):
        dist = 0
        for j in range(i-1, max(-1, i-24), -1):
            p = ins[j]
            if p.op in ('s_endpgm', 's_branch'): break
            need = 0; why = ''
            pv = {x for x in p.w if x[0] == 'v'}
            ps = {x for x in p.w if x[0] == 's'}
            if p.mfma:
                npass = 8 if '32x32' in p.op else 4
                big = 12 if npass == 8 else 8
                if c.mfma:
                    if pv & c.ab: need = max(need, big); why = 'mfma D->AB'
                    if pv & c.srcc and not (c.srcc == p.w and c.op == p.op): need = max(need, big-2); why = 'mfma D->C partial'
                    if pv & c.w and not (c.srcc == p.w and c.w == p.w):
                        need = max(need, big-2 if not (pv & c.srcc) else need); why = why or 'mfma WAW'
                elif c.valu or c.vmem or c.ds:
                    if pv & (c.r | c.w): need = max(need, big); why = 'mfma D->valu/mem'
                if c.valu and (p.srcc & c.w): need = max(need, 7 if npass == 8 else 3); why = why or 'mfma C WAR'
            if p.valu:
                if c.mfma and pv & c.r: need = max(need, 2); why = 'valu->mfma'
                if p.trans and c.valu and not c.trans and pv & c.r: need = max(need, 1); why = 'trans->valu'
                if p.trans and (c.vmem or c.ds) and pv & c.r: need = max(need, 1); why = 'trans->mem'
                if c.op.startswith('v_permlane') and pv & c.r: need = max(need, 2); why = 'valu->permlane'
                if (c.op.startswith('v_readlane') or c.op.startswith('v_readfirstlane')) and pv & c.r: need = max(need, 1); why = 'valu->readlane'
                if 'dpp' in c.text and pv & c.r: need = max(need, 2); why = 'valu->dpp'
                if ps and c.valu and ps & c.r: need = max(need, 2); why = 'valu sgpr->valu'
                if ps and c.vmem and ps & c.r: need = max(need, 5); why = 'valu sgpr->vmem'
                if ps and c.salu and ps & c.r and not c.op.startswith('s_cbranch'): need = max(need, 1); why = 'valu sgpr->salu (pad)'
            if p.salu and ('s','m0') in p.w and c.lds_dma: need = max(need, 1); why = 'm0->dma'
            if p.vmem and hasattr(p, 'store_data') and ('x4' in p.op or 'x3' in p.op):
                if c.valu and p.store_data & c.w: need = max(need, 2); why = 'store data WAR'
                elif p.store_data & c.w: need = max(need, 1); why = 'store data WAR'
            if need > dist:
                errs.append(f'line {c.ln}: [{c.text}] needs {need} states after line {p.ln} [{p.text}] ({why}), has {dist}')
            dist += p.states
    if verbose:
        for e in errs[:30]: print('HAZARD', e)
        print(f'hazard check: {len(ins)} instrs, {len(errs)} problems')
    return errs
if __name__ == '__main__':
    import sys
    check(open(sys.argv[1]).read())
```

```python
import sys, math, struct
from asmlib import *
import hazard
import gen as g1

def f32bits(x): return struct.unpack('<I', struct.pack('<f', x))[0]
U = 16384
SCALE = 128 ** -0.5 * math.log2(math.e)
THR = 2.0 ** 24
STAMP_OFF = 200 << 20
def vr(b, n=4): return f'v[{b}:{b+n-1}]'
MF = 'v_mfma_f32_16x16x32_bf16'

def O_(qt, v): return (qt*8 + v)*4
def QA(qt, u, T): return 96 + (u*3+qt)*8 + 4*T
def Q_(qt, u): return QA(qt, u, 0)
def S_(qt, T): return QA(qt, T, 1)
def P_(pb, qt): return QA(qt, 2+pb, 1)
RING = 192
def R_(f): return RING + 4*(f % 8)
def XF(par, qt): return 224 + 12*par + 4*qt
AK = 224
def L_(qt): return 228 + qt
TMP = 231
def MN(qt): return 236 + 4*qt
AW = 248; AV = 248
AX = 92; AKB = 94; AVB = 95
XSLOT = 24576; WBASE = 73728
KUNIT = [8, 0, 1, 6, 7, 8, 0, 1]
VUNIT = [9, 5, 2, 3, 4, 9, 5, 2]
FLAG_LDS = 6*U
SX, SK, SV, SWQ, SWS = 20, 24, 28, 32, 36
sW, sB, sH, sC, sT, sT2, sHH = 40, 41, 42, 43, 44, 45, 46
sI, sN, sWL, sXL, sDW, sDX, sKX, sVX, sKS, sVS = 47, 48, 49, 50, 51, 52, 53, 54, 55, 56
sTHR, sSCALE, sOB, sREDO, sMASK, sTMASK, sJ, sG = 57, 58, 59, 62, 63, 64, 65, 66
sODD = 68
sMT = 70

class Cfg:
    stamps = False
    mapping = 1
    kv_nt = True
    LA = 5
    masks = [(1 << 6) | (1 << 8) | (1 << 9)]
    tmasks = [0]
    ntouch = 0
    touch0 = 0
    look = 3
    prio = 3

def pack4(l):
    v = 0
    for i, x in enumerate(l): v |= x << (4*i)
    return v

def hstamp(a, cfg, lane_expr, vreg=250):
    if not cfg.stamps: return
    a(f's_memtime s[{sMT}:{sMT+1}]')
    if isinstance(lane_expr, str): a(f's_mov_b32 m0, {lane_expr}'); lane_expr = 'm0'
    a('s_waitcnt lgkmcnt(0)')
    a(f'v_writelane_b32 v{vreg}, s{sMT}, {lane_expr}')

def hstamp_store(a, cfg, vreg=250):
    if not cfg.stamps: return
    a(f's_memrealtime s[{sMT}:{sMT+1}]'); a('s_waitcnt lgkmcnt(0)')
    a(f'v_writelane_b32 v{vreg}, s{sMT}, 63')
    a(f'v_mbcnt_lo_u32_b32 v251, -1, 0'); a(f'v_mbcnt_hi_u32_b32 v251, -1, v251'); a('v_lshlrev_b32 v251, 2, v251')
    a(f's_lshl_b32 s{sT}, s2, 10'); a(f's_lshl_b32 s{sT2}, s{sW}, 8'); a(f's_add_u32 s{sT}, s{sT}, s{sT2}'); a(f's_add_u32 s{sT}, s{sT}, {STAMP_OFF}')
    srd(a, SWS, 18, 268435456)
    a(f'buffer_store_dword v{vreg}, v251, s[{SWS}:{SWS+3}], s{sT} offen')

def redo_check(a, vtmp, lbl_redo):
    a(f'v_mov_b32 v{vtmp}, {FLAG_LDS}')
    a(f'ds_read_b128 {vr(vtmp+1 if False else vtmp)}, v{vtmp}')
    a('s_waitcnt lgkmcnt(0)')
    a(f'v_or3_b32 v{vtmp}, v{vtmp}, v{vtmp+1}, v{vtmp+2}')
    a(f'v_or_b32 v{vtmp}, v{vtmp}, v{vtmp+3}')
    a('s_nop 0')
    a(f'v_readfirstlane_b32 s{sT}, v{vtmp}')
    a('s_nop 0')
    a(f's_cmp_lg_u32 s{sT}, 0')
    a(f's_cbranch_scc1 {lbl_redo}')

def helper_xw(a, cfg):
    lane = 1; t0, t1, t2, t3 = 2, 3, 4, 5
    VX, VW = 8, 12
    a(f'v_lshrrev_b32 v{t0}, 3, v{lane}')
    a(f's_mul_i32 s{sT}, s{sHH}, 96')
    a(f'v_add_u32 v{t0}, s{sT}, v{t0}')
    a(f'v_mul_u32_u24 v{t0}, 1152, v{t0}')
    a(f'v_lshrrev_b32 v{t2}, 4, v{lane}')
    a(f'v_and_b32 v{t1}, 7, v{lane}')
    a(f'v_xor_b32 v{t1}, v{t1}, v{t2}')
    a(f'v_lshl_add_u32 v{VX}, v{t1}, 4, v{t0}')
    a(f'v_xor_b32 v{t1}, 4, v{t1}')
    a(f'v_lshl_add_u32 v{VX+1}, v{t1}, 4, v{t0}')
    a(f'v_add_u32 v{VX+1}, 8192, v{VX+1}')
    a(f'v_add_u32 v{VX+2}, 16384, v{VX}')
    a(f'v_add_u32 v{VX+3}, 16384, v{VX+1}')
    a(f's_lshl_b32 s{sT}, s{sHH}, 4')
    a(f'v_add_u32 v{t0}, s{sT}, v{t2}')
    a(f'v_lshlrev_b32 v{t0}, 13, v{t0}')
    a(f'v_and_b32 v{t1}, 1, v{t2}')
    a(f'v_lshrrev_b32 v{t3}, 5, v{lane}')
    a(f'v_lshl_or_b32 v{t1}, v{t3}, 2, v{t1}')
    a(f'v_and_b32 v{t3}, 15, v{lane}')
    a(f'v_xor_b32 v{t1}, v{t1}, v{t3}')
    a(f'v_lshl_add_u32 v{VW}, v{t1}, 4, v{t0}')
    a(f'v_add_u32 v{VW+1}, 31744, v{VW}')
    a(f'v_xor_b32 v{VW+2}, 128, v{VW}')
    a(f'v_add_u32 v{VW+2}, 63488, v{VW+2}')
    a(f'v_add_u32 v{VW+3}, 31744, v{VW+2}')
    a(f's_lshl_b32 s{sT}, s{sHH}, 12')
    a(f's_add_u32 s{sWL}, s{sT}, {WBASE + 4*8192}')
    a(f's_add_u32 s{sDW}, s{sT}, {WBASE + 7*8192}')
    a(f's_mul_i32 s{sXL}, s{sHH}, 12288')
    a(f's_add_u32 s{sDX}, s{sXL}, {3*XSLOT}')
    a(f's_mov_b32 s{sI}, 0')
    a(f's_mul_i32 s{sT}, s{sB}, 221184')
    a(f's_lshl_b32 s{sT2}, s{sH}, 8')
    a('s_waitcnt lgkmcnt(0)')
    a(f's_add_u32 s{SX}, s4, s{sT}'); a(f's_addc_u32 s{SX+1}, s5, 0'); a(f's_mov_b32 s{SX+2}, 221184'); a(f's_mov_b32 s{SX+3}, 0x00020000')
    a(f's_add_u32 s{SWQ}, s10, s{sT2}'); a(f's_addc_u32 s{SWQ+1}, s11, 0'); a(f's_sub_u32 s{SWQ+2}, {576*8192}, s{sT2}'); a(f's_mov_b32 s{SWQ+3}, 0x00020000')
    hstamp(a, cfg, 1)
    a.label('L_xw')
    def wl(extra):
        a(f's_mov_b32 m0, s{sWL}')
        a(f's_lshl_b32 s{sT}, s{sC}, 19')
        if extra: a(f's_add_u32 s{sT}, s{sT}, {extra}')
        for p in range(4): a(f'buffer_load_dwordx4 v{VW+p}, s[{SWQ}:{SWQ+3}], s{sT} offen offset:{p*1024} lds')
        a(f's_add_u32 s{sWL}, s{sWL}, 8192'); a(f's_cmp_eq_u32 s{sWL}, s{sDW}'); a(f's_cselect_b32 s{sT}, {7*8192}, 0'); a(f's_sub_u32 s{sWL}, s{sWL}, s{sT}')
    wl(0)
    a(f's_lshl_b32 s{sT2}, s{sC}, 7')
    for g in range(3):
        a(f's_add_u32 m0, s{sXL}, {g*4096}')
        if g: a(f's_add_u32 s{sT2}, s{sT2}, 36864')
        else: a('s_nop 0')
        for p in range(4): a(f'buffer_load_dwordx4 v{VX+p}, s[{SX}:{SX+3}], s{sT2} offen offset:{p*1024} lds')
    wl(262144)
    a(f's_add_u32 s{sXL}, s{sXL}, {XSLOT}'); a(f's_cmp_eq_u32 s{sXL}, s{sDX}'); a(f's_cselect_b32 s{sT}, {3*XSLOT}, 0'); a(f's_sub_u32 s{sXL}, s{sXL}, s{sT}')
    a(f's_add_u32 s{sC}, s{sC}, 1'); a(f's_cmp_eq_u32 s{sC}, 9'); a(f's_cselect_b32 s{sC}, 0, s{sC}')
    a(f's_add_u32 s{sI}, s{sI}, 1'); a(f's_cmp_eq_u32 s{sI}, 1'); a('s_cbranch_scc1 L_xw')
    if cfg.stamps:
        a(f's_add_u32 s{sT}, s{sI}, 40'); hstamp(a, cfg, f's{sT}')
    a('s_waitcnt vmcnt(20)')
    if cfg.stamps:
        a(f's_add_u32 s{sT}, s{sI}, 20'); hstamp(a, cfg, f's{sT}')
    a('s_barrier')
    hstamp(a, cfg, f's{sI}')
    a(f's_cmp_lt_u32 s{sI}, 9'); a('s_cbranch_scc1 L_xw')
    a('s_waitcnt vmcnt(0)')
    hstamp(a, cfg, 30)
    a('s_barrier')
    hstamp(a, cfg, 10)
    a.label('L_xw2')
    a(f's_mov_b32 s{sI}, 10')
    a.label('L_xwb')
    a('s_barrier')
    a(f's_sub_u32 s{sI}, s{sI}, 1'); a(f's_cmp_lg_u32 s{sI}, 0'); a('s_cbranch_scc1 L_xwb')
    redo_check(a, 4, 'L_xw_redo')
    hstamp_store(a, cfg)
    a('s_endpgm')
    a.label('L_xw_redo')
    a('s_barrier')
    a('s_branch L_xw2')

def helper_kv(a, cfg):
    lane = 1; t0, t1, t2, t3 = 2, 3, 4, 5
    VK, VV, VT, VD = 8, 12, 16, 20
    nt = ' nt' if cfg.kv_nt else ''
    a(f'v_lshrrev_b32 v{t2}, 4, v{lane}')
    a(f'v_and_b32 v{t3}, 15, v{lane}')
    a(f's_lshl_b32 s{sXL}, s{sHH}, 13')
    a(f'v_lshl_add_u32 v{t1}, v{t2}, 8, s{sXL}')
    a(f'v_xor_b32 v{t0}, v{t2}, v{t3}')
    a(f'v_lshl_add_u32 v{VK}, v{t0}, 4, v{t1}')
    for j in range(1, 4): a(f'v_xor_b32 v{VK+j}, {(j << 6) | ((j >> 1) << 12)}, v{VK}')
    a(f'v_lshlrev_b32 v{t0}, 1, v{t2}')
    a(f'v_xor_b32 v{t0}, v{t0}, v{t3}')
    a(f'v_lshl_add_u32 v{VV}, v{t0}, 4, v{t1}')
    for j in range(1, 4): a(f'v_xor_b32 v{VV+j}, {((j & 1) << 7) | ((j >> 1) << 12)}, v{VV}')
    a(f'v_lshlrev_b32 v{VT}, 7, v{lane}')
    late = sum(1 << (11 - cfg.look + j) for j in range(3, 8))
    ng = len(cfg.masks)
    a(f's_mov_b32 s{sMASK}, {cfg.masks[0] | late}'); a(f's_mov_b32 s{sTMASK}, {cfg.tmasks[0]}')
    for gi in range(1, ng):
        a(f's_cmp_eq_u32 s{sG}, {gi}')
        a(f's_cselect_b32 s{sMASK}, {cfg.masks[gi] | late}, s{sMASK}')
        a(f's_cselect_b32 s{sTMASK}, {cfg.tmasks[gi]}, s{sTMASK}')
    a(f's_mov_b32 s{sI}, 0')
    a(f's_lshl_b32 s{sT}, s{sB}, 5'); a(f's_add_u32 s{sT}, s{sT}, s{sH}'); a(f's_lshl_b32 s{sT}, s{sT}, 17')
    a('s_waitcnt lgkmcnt(0)')
    a(f's_add_u32 s{SK}, s6, s{sT}'); a(f's_addc_u32 s{SK+1}, s7, 0'); a(f's_mov_b32 s{SK+2}, 131072'); a(f's_mov_b32 s{SK+3}, 0x00020000')
    a(f's_add_u32 s{SV}, s8, s{sT}'); a(f's_addc_u32 s{SV+1}, s9, 0'); a(f's_mov_b32 s{SV+2}, 131072'); a(f's_mov_b32 s{SV+3}, 0x00020000')
    hstamp(a, cfg, 61)
    a.label('L_kv0')
    a(f's_mov_b32 s{sKS}, {pack4(KUNIT):#x}'); a(f's_mov_b32 s{sVS}, {pack4(VUNIT):#x}'); a(f's_mov_b32 s{sJ}, 0')
    a.label('L_kv')
    if cfg.ntouch:
        a(f's_bitcmp1_b32 s{sTMASK}, s{sI}'); a('s_cbranch_scc0 L_kv_nt')
        a(f's_cmp_eq_u32 s{sHH}, 0'); a('s_cbranch_scc0 L_kv_tv')
        for srdn, nxt in ((SK, 'L_kv_nt'), (SV, None)):
            for i in range(cfg.ntouch):
                a(f's_mov_b32 s{sT}, {(cfg.touch0 + i)*8192}')
                a(f'buffer_load_dword v{VD}, v{VT}, s[{srdn}:{srdn+3}], s{sT} offen')
            if nxt: a(f's_branch {nxt}'); a.label('L_kv_tv')
        a.label('L_kv_nt')
    a(f's_bitcmp1_b32 s{sMASK}, s{sI}'); a('s_cbranch_scc0 L_kv_ni')
    for (seq, srdn, vb) in ((sKS, SK, VK), (sVS, SV, VV)):
        a(f's_and_b32 s{sT}, s{seq}, 15'); a(f's_lshl_b32 s{sT}, s{sT}, 14'); a(f's_add_u32 m0, s{sT}, s{sXL}'); a(f's_lshr_b32 s{seq}, s{seq}, 4')
        for p in range(8):
            if p == 4: a('s_add_u32 m0, m0, 4096'); a('s_nop 0')
            a(f'buffer_load_dwordx4 v{vb + (p >> 1)}, s[{srdn}:{srdn+3}], s{sJ} offen offset:{(p & 3)*1024}{nt} lds')
    a(f's_add_u32 s{sJ}, s{sJ}, 16384')
    a.label('L_kv_ni')
    if cfg.stamps:
        a(f's_add_u32 s{sT}, s{sI}, 40'); hstamp(a, cfg, f's{sT}')
    a(f's_cmp_lt_u32 s{sI}, 9'); a('s_cbranch_scc1 L_kv_nw')
    a(f's_waitcnt vmcnt({8 + 16*(cfg.look-2)})')
    a.label('L_kv_nw')
    if cfg.stamps:
        a(f's_add_u32 s{sT}, s{sI}, 20'); hstamp(a, cfg, f's{sT}')
    a(f's_cmp_lt_u32 s{sI}, s{sN}'); a('s_cbranch_scc1 L_kv_nb')
    a('s_barrier')
    a.label('L_kv_nb')
    hstamp(a, cfg, f's{sI}')
    last = 11 - cfg.look + 7
    a(f's_add_u32 s{sI}, s{sI}, 1'); a(f's_cmp_le_u32 s{sI}, {last}'); a('s_cbranch_scc1 L_kv')
    for idx in range(last+1, 18):
        i = idx - 10
        n = max(0, 16 - (2*i+3))*8
        a(f's_waitcnt vmcnt({n})')
        hstamp(a, cfg, 20+idx)
        a('s_barrier')
        hstamp(a, cfg, idx)
    a('s_barrier')
    hstamp(a, cfg, 18)
    redo_check(a, 4, 'L_kv_redo')
    hstamp_store(a, cfg)
    a('s_endpgm')
    a.label('L_kv_redo')
    a('s_barrier')
    a(f's_mov_b32 s{sI}, 0'); a(f's_mov_b32 s{sN}, 9'); a(f's_mov_b32 s{sTMASK}, 0')
    a('s_branch L_kv0')

class Stream:
    def __init__(s, a): s.a = a; s.q = []
    def read(s, txt, tag): s.a(txt); s.q.append(tag)
    def wait(s, tags):
        last = -1
        for i, t in enumerate(s.q):
            if t in tags: last = i
        assert last >= 0, tags
        n = len(s.q) - 1 - last
        assert n <= 15, n
        s.a(f's_waitcnt lgkmcnt({n})')

def conv_list(k):
    u, qt = divmod(k, 3)
    s0 = QA(qt, u, 0); s1 = s0 + 4
    m = f's[{sODD}:{sODD+1}]'
    l = [f'v_mul_f32 v{s0+r}, s{sSCALE}, v{s0+r}' for r in range(8)]
    l += [f'v_cvt_pk_bf16_f32 v{s0}, v{s0}, v{s0+1}', f'v_cvt_pk_bf16_f32 v{s0+1}, v{s0+2}, v{s0+3}',
          f'v_cvt_pk_bf16_f32 v{s1}, v{s1}, v{s1+1}', f'v_cvt_pk_bf16_f32 v{s1+1}, v{s1+2}, v{s1+3}',
          f'v_cndmask_b32 v{s0+2}, v{s1}, v{s0}, {m}', f'v_cndmask_b32 v{s0+3}, v{s1+1}, v{s0+1}, {m}',
          f'v_cndmask_b32 v{s0}, v{s0}, v{s1}, {m}', f'v_cndmask_b32 v{s0+1}, v{s0+1}, v{s1+1}, {m}']
    return l

def sm_gaps(pb):
    d = {}
    for gi in range(6):
        T, qt = divmod(gi, 3)
        s = 13 + 8*gi; S = S_(qt, T); P = P_(pb, qt) + 2*T
        for r in range(4):
            d.setdefault(s+2*r, []).append(f'v_exp_f32 v{S+r}, v{S+r}')
            d.setdefault(s+2*r+1, []).append(f'v_add_f32 v{L_(qt)}, v{L_(qt)}, v{S+r}')
        d[s+3].append(f'v_cvt_pk_bf16_f32 v{P}, v{S}, v{S+1}')
        d[s+7].append(f'v_cvt_pk_bf16_f32 v{P+1}, v{S+2}, v{S+3}')
    return d

def kread(f, half):
    T, u = divmod(f, 4)
    return f'ds_read_b128 {vr(R_(f))}, v{AK+u} offset:{half*8192 + T*1024}'
def vread(v, part, half):
    d = R_(v) + 2*part
    return f'ds_read_b64_tr_b16 v[{d}:{d+1}], v{AV+v} offset:{half*8192 + part*1024}'

def compute(a, cfg):
    lane = TMP+4; t0, t1, t2, t3 = 192, 193, 194, 195
    r_, c_, t4 = 196, 197, 198
    LA = cfg.LA
    a(f's_setprio {cfg.prio}')
    a(f'v_mov_b32 v{lane}, v1')
    a(f's_sub_u32 s{sHH}, s{sW}, 4')
    a(f'v_and_b32 v{t0}, 15, v{lane}')
    a(f'v_lshrrev_b32 v{t2}, 4, v{lane}')
    a(f's_mul_i32 s{sT}, s{sHH}, {48*128}')
    a(f'v_lshl_add_u32 v{t1}, v{t0}, 7, s{sT}')
    a(f'v_lshrrev_b32 v{t3}, 1, v{t0}')
    a(f'v_xor_b32 v{t3}, v{t3}, v{t2}')
    a(f'v_lshl_add_u32 v{AX}, v{t3}, 4, v{t1}')
    a(f'v_xor_b32 v{AX+1}, 64, v{AX}')
    a(f'v_and_b32 v{t1}, 3, v{t0}')
    a(f'v_lshrrev_b32 v{t3}, 2, v{t0}')
    a(f'v_lshl_add_u32 v{t1}, v{t3}, 3, v{t1}')
    a(f'v_lshlrev_b32 v{t1}, 8, v{t1}')
    a(f'v_xor_b32 v{t3}, v{t0}, v{t2}')
    a(f'v_lshl_add_u32 v{AKB}, v{t3}, 4, v{t1}')
    a(f'v_bfe_u32 v{r_}, v{lane}, 2, 2')
    a(f'v_and_b32 v{c_}, 3, v{lane}')
    a(f'v_lshl_add_u32 v{t1}, v{t2}, 3, v{r_}')
    a(f'v_lshlrev_b32 v{t1}, 8, v{t1}')
    a(f'v_and_b32 v{t0}, 1, v{t2}')
    a(f'v_lshl_or_b32 v{t3}, v{t0}, 2, v{r_}')
    a(f'v_lshlrev_b32 v{t3}, 5, v{t3}')
    a(f'v_lshl_or_b32 v{t3}, v{c_}, 3, v{t3}')
    a(f'v_add_u32 v{AVB}, v{t3}, v{t1}')
    a(f'v_and_b32 v{t3}, 1, v{r_}')
    a(f'v_xor_b32 v{t3}, v{t3}, v{c_}')
    a(f'v_lshrrev_b32 v{t4}, 1, v{r_}')
    a(f'v_lshl_or_b32 v{t3}, v{t4}, 2, v{t3}')
    a(f'v_lshl_or_b32 v{t3}, v{t0}, 3, v{t3}')
    a(f'v_lshlrev_b32 v{t3}, 4, v{t3}')
    a(f'v_and_b32 v{t4}, 1, v{c_}')
    a(f'v_lshl_or_b32 v{t3}, v{t4}, 3, v{t3}')
    a(f'v_add_u32 v{t3}, v{t3}, v{t1}')
    a(f'v_add_u32 v{t3}, {WBASE + 4*8192}, v{t3}')
    for f in range(8): a(f'v_xor_b32 v{AW+f}, {((f >> 1) << 6) | ((f & 1) << 3)}, v{t3}')
    a(f'v_cmp_eq_u32 s[{sODD}:{sODD+1}], 1, v{t0}')
    a(f's_mov_b32 s{sTHR}, {f32bits(THR):#x}')
    a(f's_mov_b32 s{sSCALE}, {f32bits(SCALE):#x}')
    a(f's_mov_b32 s{sREDO}, 0')
    a(f's_mov_b32 s{sWL}, 4'); a(f's_mov_b32 s{sXL}, 0'); a(f's_mov_b32 s{sI}, 9')
    zr = list(range(0, 92, 2)) + list(range(96, 224, 2)) + list(range(236, 248, 2))
    for r in zr: a(f'v_pk_mov_b32 v[{r}:{r+1}], 0, 0')
    a(f's_mul_i32 s{sOB}, s{sB}, 12'); a(f's_mul_i32 s{sT}, s{sHH}, 3'); a(f's_add_u32 s{sOB}, s{sOB}, s{sT}')
    a(f's_lshl_b32 s{sOB}, s{sOB}, 5'); a(f's_add_u32 s{sOB}, s{sOB}, s{sH}'); a(f's_lshl_b32 s{sOB}, s{sOB}, 12')
    a(f's_add_u32 s{sOB+1}, s{sOB}, 131072'); a(f's_add_u32 s{sOB+2}, s{sOB}, 262144')
    a('s_waitcnt lgkmcnt(0)')
    srd(a, SWS, 18, 268435456)
    def wstep():
        return [f's_add_u32 s{sWL}, s{sWL}, 1', f's_cmp_eq_u32 s{sWL}, 7', f's_cselect_b32 s{sDW}, {(-6*8192) & 0xffffffff:#x}, s{sN}', f's_cselect_b32 s{sWL}, 0, s{sWL}']
    a(f's_mov_b32 s{sN}, 8192')
    a(f's_mov_b32 s{sJ}, {XSLOT}')
    def p1_mfma(fr, qt):
        f = fr % 16; par = f >> 3; tile = f & 7
        acc = QA(qt, tile >> 1, tile & 1)
        return f'{MF} {vr(acc)}, {vr(R_(f))}, {vr(XF(par, qt))}, {vr(acc)}'
    def wread(f, hh):
        d = R_(f) + 2*hh
        return f'ds_read_b64_tr_b16 v[{d}:{d+1}], v{AW + (f & 7)} offset:{hh*1024}'
    st = Stream(a)
    def p1_body(emit):
        for p in range(16):
            fr = p - LA
            for qt in range(3):
                if qt == 0:
                    tags = [('w', fr % 16)]
                    if fr % 8 == 0: tags += [('x', (fr % 16) >> 3, 2)]
                    if emit: st.wait(tags)
                if emit: a(p1_mfma(fr, qt))
                if qt < 2:
                    if emit: st.read(wread(p, qt), ('w', p))
                    else: st.q.append(('w', p))
                    if qt == 1 and emit: a(f'v_add_u32 v{AW + (p & 7)}, s{sDW}, v{AW + (p & 7)}')
                else:
                    xi = None
                    if p < 3: xi = (0, p)
                    elif LA + 1 <= p < LA + 4: xi = (1, p - LA - 1)
                    if xi:
                        if emit: st.read(f'ds_read_b128 {vr(XF(*xi))}, v{AX + xi[0]} offset:{xi[1]*2048}', ('x',) + xi)
                        else: st.q.append(('x',) + xi)
                        if xi[1] == 2 and emit: a(f'v_add_u32 v{AX + xi[0]}, s{sDX}, v{AX + xi[0]}')
                    if emit and p == 7:
                        for x in wstep(): a(x)
                    if emit and p == 14:
                        a(f's_sub_u32 s{sI}, s{sI}, 1')
    p1_body(False)
    a.label('L_p1')
    a('s_barrier')
    for x in wstep(): a(x)
    a(f's_add_u32 s{sXL}, s{sXL}, 1'); a(f's_cmp_eq_u32 s{sXL}, 3'); a(f's_cselect_b32 s{sDX}, {(-2*XSLOT) & 0xffffffff:#x}, s{sJ}'); a(f's_cselect_b32 s{sXL}, 0, s{sXL}')
    p1_body(True)
    a(f's_cmp_lg_u32 s{sI}, 0'); a('s_cbranch_scc1 L_p1')
    for u in range(4): a(f'v_xor_b32 v{AK+u}, {(u << 6) | (KUNIT[0]*U)}, v{AKB}')
    a('s_barrier')
    vl = []
    misc = [f'v_xor_b32 v{AV+v}, {(v << 5) | (VUNIT[0]*U)}, v{AVB}' for v in range(8)]
    misc += [f'v_pk_mov_b32 v[92:93], 0, 0', f'v_pk_mov_b32 v[94:95], 0, 0'] + [f'v_mov_b32 v{L_(qt)}, 0xff800000' for qt in range(3)]
    nleft = 3*LA
    for k in range(12):
        u = k // 3
        pos = (9 + 2*u) - (16 - LA)
        early = max(0, 3*(pos+1) + 3) if pos >= 0 else 0
        for x in conv_list(k): vl.append((x, early))
        if k == 2:
            for x in misc: vl.append((x, 0))
    def vidx(k): return (k+1)*16 + (len(misc) if k >= 2 else 0)
    ml = []
    for p in range(LA):
        for qt in range(3): ml.append(dict(t=p1_mfma(p - LA, qt), need=0, wait=[('w', (p - LA) % 16)] if qt == 0 else None))
    korder = [0, 1, 2, 3, 4, 5, 6, 7]
    for f in korder:
        T, u = divmod(f, 4)
        for qt in range(3):
            c = '0' if u == 0 else vr(S_(qt, T))
            ml.append(dict(t=f'{MF} {vr(S_(qt, T))}, {vr(R_(f))}, {vr(Q_(qt, u))}, {c}', need=vidx(u*3+qt) + 2 if T == 0 else 0, wait=[('k', f)] if qt == 0 else None))
    mx = []
    for qt in range(3): mx.append(f'v_max3_f32 v{L_(qt)}, v{L_(qt)}, v{S_(qt,0)}, v{S_(qt,0)+1}')
    for qt in range(3): mx.append(f'v_max3_f32 v{L_(qt)}, v{L_(qt)}, v{S_(qt,0)+2}, v{S_(qt,0)+3}')
    mx += g1.xreduce('v_max_f32', [L_(0), L_(1), L_(2)], [TMP, TMP+1, TMP+2])
    for r in range(4):
        for qt in range(3): mx.append(f'v_sub_f32 v{S_(qt,0)+r}, v{S_(qt,0)+r}, v{L_(qt)}')
    for r in range(4):
        for qt in range(3): mx.append(f'v_sub_f32 v{MN(qt)+r}, 0, v{L_(qt)}')
    for qt in range(3): mx.append(f'v_mov_b32 v{L_(qt)}, 0')
    nT0 = nleft + 12
    kr = {}
    for f in range(8):
        pos = f - (8 - LA)
        kr.setdefault(max(0, 3*(pos+1)), []).append(f)
    vi = 0
    for mi, m in enumerate(ml[:nT0]):
        for f in kr.get(mi, []): st.read(kread(f, 0), ('k', f))
        while vi < min(m['need'], len(vl)):
            assert vl[vi][1] <= mi, (vi, mi)
            a(vl[vi][0]); vi += 1
        if m['need'] > len(vl): a('s_nop 1')
        if m['wait']: st.wait(m['wait'])
        a(m['t'])
        for _ in range(2):
            if vi < len(vl) and vl[vi][1] <= mi + 1: a(vl[vi][0]); vi += 1
    assert vi == len(vl)
    a.label('L_reenter')
    xi = 0
    for j, m in enumerate(ml[nT0:]):
        if m['wait']: st.wait(m['wait'])
        a(m['t'])
        if j < 4: st.read(kread(j, 1), ('K', j))
        if j >= 3:
            for _ in range(3):
                if xi < len(mx): a(mx[xi]); xi += 1
    for f in (4, 5, 6): st.read(kread(f, 1), ('K', f))
    while xi < len(mx): a(mx[xi]); xi += 1
    sm0 = sm_gaps(0)
    t1sub = [f'v_add_f32 v{S_(qt,1)+r}, v{MN(qt)}, v{S_(qt,1)+r}' for qt in range(3) for r in range(4)]
    for gq in range(13, 48):
        for x in sm0[gq]: a(x)
        if gq % 2 == 1:
            assert t1sub or True
            if t1sub: a(t1sub.pop(0))
            else: a('s_nop 0')
    kx = [KUNIT[i] ^ KUNIT[i+1] for i in range(7)] + [0]
    vx = [VUNIT[i] ^ VUNIT[i+1] for i in range(7)] + [0]
    a(f's_mov_b32 s{sKS}, {pack4(kx):#x}'); a(f's_mov_b32 s{sVS}, {pack4(vx):#x}'); a(f's_mov_b32 s{sI}, 8')
    def half(hf):
        prev = sm_gaps(hf); cur = sm_gaps(1 - hf)
        for idx in range(48):
            f, qt = divmod(idx, 3)
            if f < 8:
                T, u = divmod(f, 4)
                c = vr(MN(qt)) if u == 0 else vr(S_(qt, T))
                a(f'{MF} {vr(S_(qt, T))}, {vr(R_(f))}, {vr(Q_(qt, u))}, {c}')
            else:
                v = f - 8
                a(f'{MF} {vr(O_(qt, v))}, {vr(R_(v))}, {vr(P_(hf, qt))}, {vr(O_(qt, v))}')
            if idx % 2 == 0:
                r = (idx + 14)//2
                if r < 8: st.read(kread(r, 1 - hf), ('K', r))
                elif r < 24: st.read(vread((r-8) >> 1, (r-8) & 1, hf), ('V', (r-8) >> 1))
                else: st.read(kread(r - 24, hf), ('K', r - 24))
            else:
                if idx == 1 and hf == 0: a('s_barrier')
                if (idx + 1) % 6 == 0:
                    f2 = ((idx + 1)//3 + 1) % 16
                    st.wait([('K', f2)] if f2 < 8 else [('V', f2 - 8)])
                if hf == 0 and idx == 3:
                    a(f's_and_b32 s{sKX}, s{sKS}, 15')
                if hf == 0 and idx == 7: a(f's_lshl_b32 s{sKX}, s{sKX}, 14')
                if hf == 0 and idx == 9: a(f's_lshr_b32 s{sKS}, s{sKS}, 4')
                if hf == 0 and idx == 13: a(f's_and_b32 s{sVX}, s{sVS}, 15')
                if hf == 0 and idx == 15: a(f's_lshl_b32 s{sVX}, s{sVX}, 14')
                if hf == 0 and idx == 19: a(f's_lshr_b32 s{sVS}, s{sVS}, 4')
                if hf == 0 and idx == 43: a(f's_sub_u32 s{sI}, s{sI}, 1')
                if hf == 0 and idx == 45: a(f's_cmp_eq_u32 s{sI}, 0')
            for x in prev.get(idx + 48, []) + cur.get(idx, []): a(x)
            if idx % 4 == 2:
                if hf == 0 and 10 <= idx <= 22:
                    u = (idx - 10)//4
                    a(f'v_xor_b32 v{AK+u}, s{sKX}, v{AK+u}')
                if hf == 1 and 10 <= idx <= 38:
                    v = (idx - 10)//4
                    a(f'v_xor_b32 v{AV+v}, s{sVX}, v{AV+v}')
    st.wait([('K', 1)])
    a.label('L_p2')
    half(0)
    a('s_cbranch_scc1 L_tail')
    q_exit = list(st.q)
    half(1)
    a('s_branch L_p2')
    a.label('L_tail')
    st.q = q_exit
    prev = sm_gaps(1)
    rest = [x for gq in range(48, 61) for x in prev[gq]]
    vrd = [(v, part) for v in range(8) for part in range(2)]
    for i, x in enumerate(rest):
        if i < len(vrd): st.read(vread(vrd[i][0], vrd[i][1], 1), ('V', vrd[i][0]))
        a(x)
    assert len(rest) >= len(vrd)
    fin = g1.xreduce('v_add_f32', [L_(0), L_(1), L_(2)], [TMP, TMP+1, TMP+2])
    fin += [f'v_max3_f32 v{TMP}, v{L_(0)}, v{L_(1)}, v{L_(2)}', f'v_add_f32 v{TMP+1}, v{L_(0)}, v{L_(1)}']
    fin += [f'v_rcp_f32 v{L_(qt)}, v{L_(qt)}' for qt in (0, 1)]
    fin += [f'v_cmp_nge_f32 vcc, s{sTHR}, v{TMP}', f'v_cmp_u_f32 s[{sMT}:{sMT+1}], v{TMP+1}, v{L_(2)}', f'v_rcp_f32 v{L_(2)}, v{L_(2)}']
    fin += [f'v_mbcnt_lo_u32_b32 v{lane}, -1, 0', f'v_mbcnt_hi_u32_b32 v{lane}, -1, v{lane}', f'v_lshlrev_b32 v{lane}, 4, v{lane}', f's_lshl_b32 s{sT2}, s{sHH}, 2', f's_add_u32 s{sT2}, s{sT2}, {FLAG_LDS}',
            f's_or_b64 vcc, vcc, s[{sMT}:{sMT+1}]', f's_cselect_b32 s{sT}, 1, 0', f's_andn2_b32 s{sT}, s{sT}, s{sREDO}', f'v_mov_b32 v{TMP}, s{sT2}', f'v_mov_b32 v{TMP+1}, s{sT}',
            f'ds_write_b32 v{TMP}, v{TMP+1}']
    def nrm(uu):
        l = []
        for qt in range(3):
            o0 = O_(qt, 2*uu)
            l += [f'v_mul_f32 v{o0+r}, v{o0+r}, v{L_(qt)}' for r in range(8)]
            l += [f'v_cvt_pk_bf16_f32 v{o0+r}, v{o0+2*r}, v{o0+2*r+1}' for r in range(4)]
            l += [f'buffer_store_dwordx4 {vr(o0)}, v{lane}, s[{SWS}:{SWS+3}], s{sOB+qt} offen offset:{uu*1024}']
        return l
    fl = [(x, 0) for x in fin]
    for uu in range(4): fl += [(x, 6*uu + 6 + 4) for x in nrm(uu)]
    fi = 0
    for idx in range(24):
        v, qt = divmod(idx, 3)
        if qt == 0: st.wait([('V', v)])
        a(f'{MF} {vr(O_(qt, v))}, {vr(R_(v))}, {vr(P_(1, qt))}, {vr(O_(qt, v))}')
        for _ in range(3):
            if fl[fi][1] <= idx + 1:
                a(fl[fi][0])
                if fl[fi][0].startswith('ds_write'): st.q.append(('fl',))
                fi += 1
    while fi < len(fl): a(fl[fi][0]); fi += 1
    a('s_waitcnt lgkmcnt(0)')
    a('s_barrier')
    redo_check(a, 192, 'L_redo')
    a('s_endpgm')
    a.label('L_redo')
    a(f's_mov_b32 s{sREDO}, 1')
    a(f's_lshl_b32 s{sT}, s{sB}, 5'); a(f's_add_u32 s{sT}, s{sT}, s{sH}'); a(f's_lshl_b32 s{sT}, s{sT}, 17')
    a(f's_add_u32 s{SK}, s6, s{sT}'); a(f's_addc_u32 s{SK+1}, s7, 0'); a(f's_mov_b32 s{SK+2}, 131072'); a(f's_mov_b32 s{SK+3}, 0x00020000')
    a('s_waitcnt vmcnt(0)')
    a('s_barrier')
    a(f'v_lshrrev_b32 v{lane}, 4, v{lane}')
    a(f'v_and_b32 v{TMP}, 15, v{lane}'); a(f'v_lshlrev_b32 v{TMP}, 8, v{TMP}')
    a(f'v_lshrrev_b32 v{TMP+1}, 4, v{lane}'); a(f'v_lshl_add_u32 v{TMP}, v{TMP+1}, 4, v{TMP}')
    for qt in range(3): a(f'v_mov_b32 v{L_(qt)}, 0xff800000')
    for r in range(0, 96, 2): a(f'v_pk_mov_b32 v[{r}:{r+1}], 0, 0')
    a(f's_mov_b32 s{sJ}, 0')
    a.label('L_redo_max')
    for u in range(4): a(f'buffer_load_dwordx4 {vr(R_(u))}, v{TMP}, s[{SK}:{SK+3}], s{sJ} offen offset:{u*64}')
    a('s_waitcnt vmcnt(0)')
    for u in range(4):
        for qt in range(3):
            c = '0' if u == 0 else vr(S_(qt, 0))
            a(f'{MF} {vr(S_(qt, 0))}, {vr(R_(u))}, {vr(Q_(qt, u))}, {c}')
    a('s_nop 7'); a('s_nop 7')
    for x in mx[:6]: a(x)
    a(f's_add_u32 s{sJ}, s{sJ}, 4096'); a(f's_cmp_lt_u32 s{sJ}, 131072'); a('s_cbranch_scc1 L_redo_max')
    for u in range(4): a(f'v_xor_b32 v{AK+u}, {(KUNIT[7] ^ KUNIT[0])*U}, v{AK+u}')
    for v in range(8): a(f'v_xor_b32 v{AV+v}, {(VUNIT[7] ^ VUNIT[0])*U}, v{AV+v}')
    a('s_barrier')
    for f in range(8): a(kread(f, 0))
    a('s_waitcnt lgkmcnt(0)')
    for m in ml[nleft:nT0]: a(m['t'])
    a('s_branch L_reenter')

def kernel_a(cfg):
    a = Asm()
    a('s_cmp_ge_u32 s2, 256'); a('s_cbranch_scc1 L_endA')
    a('s_load_dwordx8 s[4:11], s[0:1], 0')
    a('s_load_dwordx8 s[12:19], s[0:1], 32')
    a('v_lshrrev_b32 v2, 6, v0')
    a('v_and_b32 v1, 63, v0')
    a(f'v_readfirstlane_b32 s{sW}, v2')
    if cfg.stamps:
        a(f's_memrealtime s[{sMT}:{sMT+1}]'); a(f's_memtime s[{sMT+2}:{sMT+3}]'); a('s_waitcnt lgkmcnt(0)')
        a('v_mov_b32 v250, 0')
        a(f'v_writelane_b32 v250, s{sMT}, 62'); a(f'v_writelane_b32 v250, s{sMT+2}, 60')
    a(f's_lshr_b32 s{sT}, s2, 3')
    if cfg.mapping == 0:
        a(f's_and_b32 s{sH}, s2, 7'); a(f's_lshl_b32 s{sH}, s{sH}, 2'); a(f's_and_b32 s{sT}, s{sT}, 3')
        a(f's_add_u32 s{sH}, s{sH}, s{sT}')
        a(f's_lshr_b32 s{sB}, s2, 5')
        a(f's_lshl_b32 s{sC}, s{sT}, 1'); a(f's_add_u32 s{sC}, s{sC}, s{sB}')
    else:
        a(f's_and_b32 s{sB}, s2, 1'); a(f's_lshl_b32 s{sB}, s{sB}, 2'); a(f's_and_b32 s{sT}, s{sT}, 3'); a(f's_add_u32 s{sB}, s{sB}, s{sT}')
        a(f's_and_b32 s{sH}, s2, 6'); a(f's_lshl_b32 s{sH}, s{sH}, 2'); a(f's_lshr_b32 s{sT2}, s2, 5'); a(f's_add_u32 s{sH}, s{sH}, s{sT2}')
        a(f's_lshl_b32 s{sC}, s{sT}, 1'); a(f's_add_u32 s{sC}, s{sC}, s{sT2}')
    a(f's_cmp_ge_u32 s{sC}, 9'); a(f's_cselect_b32 s{sT2}, 9, 0'); a(f's_sub_u32 s{sC}, s{sC}, s{sT2}')
    ng = len(cfg.masks)
    if ng > 1:
        a(f's_lshr_b32 s{sG}, s2, 3'); a(f's_and_b32 s{sG}, s{sG}, {ng-1}')
    a(f's_and_b32 s{sHH}, s{sW}, 1')
    a(f's_mov_b32 s{sN}, 0')
    a(f's_cmp_ge_u32 s{sW}, 4'); a('s_cbranch_scc1 L_compute')
    a(f's_cmp_ge_u32 s{sW}, 2'); a('s_cbranch_scc1 L_hkv')
    helper_xw(a, cfg)
    a.label('L_hkv')
    helper_kv(a, cfg)
    a.label('L_compute')
    compute(a, cfg)
    a.label('L_endA')
    a('s_endpgm')
    return a.text()

def build(cfg):
    ka = kernel_a(cfg); kb = g1.kernel_b(cfg)
    hazard.check(ka)
    return build_file([dict(name='attn_kernel', body=ka, grid=256, block=512, lds=163840, vgpr=256),
                       dict(name='oproj_kernel', body=kb, grid=216, block=512, lds=163840, vgpr=256)])

if __name__ == '__main__':
    cfg = Cfg()
    out = sys.argv[1]
    for kv in sys.argv[2:]:
        k, v = kv.split('=', 1)
        setattr(cfg, k, eval(v))
    open(out, 'w').write(build(cfg))
```

```python
import sys, math, struct
from asmlib import *
import hazard
import gen as g1

def f32bits(x): return struct.unpack('<I', struct.pack('<f', x))[0]
U = 16384
SCALE = 128 ** -0.5 * math.log2(math.e)
THR = 2.0 ** 24
STAMP_OFF = 200 << 20
def vr(b, n=4): return f'v[{b}:{b+n-1}]'
MF = 'v_mfma_f32_16x16x32_bf16'

def O_(qt, v): return (qt*8 + v)*4
def QA(qt, u, T): return 96 + (u*3+qt)*8 + 4*T
def Q_(qt, u): return QA(qt, u, 0)
def S_(qt, T): return QA(qt, T, 1)
def P_(pb, qt): return QA(qt, 2+pb, 1)
RING = 192
def R_(f): return RING + 4*(f % 8)
def XF(par, qt): return 224 + 12*par + 4*qt
AK = 224
def L_(qt): return 228 + qt
TMP = 231
def MN(qt): return 236 + 4*qt
AW = 248; AV = 248
AX = 92; AKB = 94; AVB = 95
XSLOT = 24576; WBASE = 73728
KUNIT = [8, 0, 1, 3, 8, 0, 1, 3]
VUNIT = [9, 5, 2, 4, 9, 5, 2, 4]
FLAG_LDS = 3*U
FLAG_OFF = 16 << 20
PFLAG_OFF = 17 << 20
PW_OFF = 20 << 20
def ACC(qt, j): return 180 + (j*3 + qt)*4
def WROW(r):
    if r == 8: return ACC(2, 5)
    if r < 8: return ACC(r >> 2, (r & 3) + 1)
    return (r - 9)*4
OPOOL = list(range(144, 180, 4))
VL16, VLD = 252, 253
VNON = 144; VPL = 146; VKQ = 148; VVQ = 150; VHT = 152
UORD = [6, 7, 8, 9, 0, 5, 1, 2, 3, 4]
SWO, SOUT, SDBG = 20, 32, 32
sR, sCS, sWB, sWD, sO = 74, 75, 76, 77, 78
sRT = 67; sOE = 81
S2 = 82
STV = 160
SX, SK, SV, SWQ, SWS = 20, 24, 28, 32, 36
sW, sB, sH, sC, sT, sT2, sHH = 40, 41, 42, 43, 44, 45, 46
sI, sN, sWL, sXL, sDW, sDX, sKX, sVX, sKS, sVS = 47, 48, 49, 50, 51, 52, 53, 54, 55, 56
sTHR, sSCALE, sOB, sREDO, sMASK, sTMASK, sJ, sG = 57, 58, 59, 62, 63, 64, 65, 66
sODD = 68
sMT = 70

class Cfg:
    stamps = False
    mapping = 1
    kv_nt = True
    LA = 5
    prio = 3
    oprio = 0
    hprio = 0
    cmap = 1
    inv = False
    rotr = 0; rotc = 0; rotm = 0; swap = 0
    touch = 0
    nraw1 = 20
    ksched = {1: ['pl'], 2: ['non'], 3: ['ps'], 5: ['pw'], 6: ['pf', 'kv0'], 8: ['kv1'], 9: ['kv2']}
    sched = {9: ['chk'], 10: ['kv3'], 11: ['kv4'], 12: ['kv5', 'w0-5'], 13: ['kv6', 'w5-10'], 14: ['kv7', 'w10-18', 'u0'], 15: ['w18-27', 'u1', 'u2'],
             16: ['w27-36', 'u3', 'u4'], 17: ['w36-45', 'u5'], 18: ['u6', 'u7'], 19: ['u8', 'u9']}

def pack4(l):
    v = 0
    for i, x in enumerate(l): v |= x << (4*i)
    return v

def st2(a, cfg, i):
    if cfg.stamps: a(f's_memtime s[{S2+2*i}:{S2+2*i+1}]')

def hstamp(a, cfg, lane_expr, vreg=STV):
    if not cfg.stamps: return
    a(f's_memtime s[{sMT}:{sMT+1}]')
    if isinstance(lane_expr, str): a(f's_mov_b32 m0, {lane_expr}'); lane_expr = 'm0'
    a('s_waitcnt lgkmcnt(0)')
    a(f'v_writelane_b32 v{vreg}, s{sMT}, {lane_expr}')

def hstamp_store(a, cfg, vreg=STV):
    if not cfg.stamps: return
    a(f's_memrealtime s[{sMT}:{sMT+1}]'); a('s_waitcnt lgkmcnt(0)')
    a(f'v_writelane_b32 v{vreg}, s{sMT}, 63')
    a(f'v_mbcnt_lo_u32_b32 v161, -1, 0'); a(f'v_mbcnt_hi_u32_b32 v161, -1, v161'); a('v_lshlrev_b32 v161, 2, v161')
    a(f's_lshl_b32 s{sT}, s2, 10'); a(f's_lshl_b32 s{sT2}, s{sW}, 8'); a(f's_add_u32 s{sT}, s{sT}, s{sT2}'); a(f's_add_u32 s{sT}, s{sT}, {STAMP_OFF}')
    srd(a, SWS, 18, 268435456)
    a(f'buffer_store_dword v{vreg}, v161, s[{SWS}:{SWS+3}], s{sT} offen')

def redo_check(a, vtmp, lbl_redo):
    a(f'v_mov_b32 v{vtmp}, {FLAG_LDS}')
    a(f'ds_read_b128 {vr(vtmp+1 if False else vtmp)}, v{vtmp}')
    a('s_waitcnt lgkmcnt(0)')
    a(f'v_or3_b32 v{vtmp}, v{vtmp}, v{vtmp+1}, v{vtmp+2}')
    a(f'v_or_b32 v{vtmp}, v{vtmp}, v{vtmp+3}')
    a('s_nop 0')
    a(f'v_readfirstlane_b32 s{sT}, v{vtmp}')
    a('s_nop 0')
    a(f's_cmp_lg_u32 s{sT}, 0')
    a(f's_cbranch_scc1 {lbl_redo}')

def helper_xw(a, cfg):
    lane = 1; t0, t1, t2, t3 = 2, 3, 4, 5
    VX, VW = 8, 12
    a(f'v_lshrrev_b32 v{t0}, 3, v{lane}')
    a(f's_mul_i32 s{sT}, s{sHH}, 96')
    a(f'v_add_u32 v{t0}, s{sT}, v{t0}')
    a(f'v_mul_u32_u24 v{t0}, 1152, v{t0}')
    a(f'v_lshrrev_b32 v{t2}, 4, v{lane}')
    a(f'v_and_b32 v{t1}, 7, v{lane}')
    a(f'v_xor_b32 v{t1}, v{t1}, v{t2}')
    a(f'v_lshl_add_u32 v{VX}, v{t1}, 4, v{t0}')
    a(f'v_xor_b32 v{t1}, 4, v{t1}')
    a(f'v_lshl_add_u32 v{VX+1}, v{t1}, 4, v{t0}')
    a(f'v_add_u32 v{VX+1}, 8192, v{VX+1}')
    a(f'v_add_u32 v{VX+2}, 16384, v{VX}')
    a(f'v_add_u32 v{VX+3}, 16384, v{VX+1}')
    a(f's_lshl_b32 s{sT}, s{sHH}, 4')
    a(f'v_add_u32 v{t0}, s{sT}, v{t2}')
    a(f'v_lshlrev_b32 v{t0}, 13, v{t0}')
    a(f'v_and_b32 v{t1}, 1, v{t2}')
    a(f'v_lshrrev_b32 v{t3}, 5, v{lane}')
    a(f'v_lshl_or_b32 v{t1}, v{t3}, 2, v{t1}')
    a(f'v_and_b32 v{t3}, 15, v{lane}')
    a(f'v_xor_b32 v{t1}, v{t1}, v{t3}')
    a(f'v_lshl_add_u32 v{VW}, v{t1}, 4, v{t0}')
    a(f'v_add_u32 v{VW+1}, 31744, v{VW}')
    a(f'v_xor_b32 v{VW+2}, 128, v{VW}')
    a(f'v_add_u32 v{VW+2}, 63488, v{VW+2}')
    a(f'v_add_u32 v{VW+3}, 31744, v{VW+2}')
    a(f's_lshl_b32 s{sT}, s{sHH}, 12')
    a(f's_add_u32 s{sWL}, s{sT}, {WBASE + 4*8192}')
    a(f's_add_u32 s{sDW}, s{sT}, {WBASE + 7*8192}')
    a(f's_mul_i32 s{sXL}, s{sHH}, 12288')
    a(f's_add_u32 s{sDX}, s{sXL}, {3*XSLOT}')
    a(f's_mov_b32 s{sI}, 0')
    a(f's_mul_i32 s{sT}, s{sB}, 221184')
    a(f's_lshl_b32 s{sT2}, s{sH}, 8')
    a('s_waitcnt lgkmcnt(0)')
    a(f's_add_u32 s{SX}, s4, s{sT}'); a(f's_addc_u32 s{SX+1}, s5, 0'); a(f's_mov_b32 s{SX+2}, 221184'); a(f's_mov_b32 s{SX+3}, 0x00020000')
    a(f's_add_u32 s{SWQ}, s10, s{sT2}'); a(f's_addc_u32 s{SWQ+1}, s11, 0'); a(f's_sub_u32 s{SWQ+2}, {576*8192}, s{sT2}'); a(f's_mov_b32 s{SWQ+3}, 0x00020000')
    hstamp(a, cfg, 1)
    a.label('L_xw')
    def wl(extra):
        a(f's_mov_b32 m0, s{sWL}')
        a(f's_lshl_b32 s{sT}, s{sC}, 19')
        if extra: a(f's_add_u32 s{sT}, s{sT}, {extra}')
        for p in range(4): a(f'buffer_load_dwordx4 v{VW+p}, s[{SWQ}:{SWQ+3}], s{sT} offen offset:{p*1024} lds')
        a(f's_add_u32 s{sWL}, s{sWL}, 8192'); a(f's_cmp_eq_u32 s{sWL}, s{sDW}'); a(f's_cselect_b32 s{sT}, {7*8192}, 0'); a(f's_sub_u32 s{sWL}, s{sWL}, s{sT}')
    wl(0)
    a(f's_lshl_b32 s{sT2}, s{sC}, 7')
    for g in range(3):
        a(f's_add_u32 m0, s{sXL}, {g*4096}')
        if g: a(f's_add_u32 s{sT2}, s{sT2}, 36864')
        else: a('s_nop 0')
        for p in range(4): a(f'buffer_load_dwordx4 v{VX+p}, s[{SX}:{SX+3}], s{sT2} offen offset:{p*1024} lds')
    wl(262144)
    a(f's_add_u32 s{sXL}, s{sXL}, {XSLOT}'); a(f's_cmp_eq_u32 s{sXL}, s{sDX}'); a(f's_cselect_b32 s{sT}, {3*XSLOT}, 0'); a(f's_sub_u32 s{sXL}, s{sXL}, s{sT}')
    a(f's_add_u32 s{sC}, s{sC}, 1'); a(f's_cmp_eq_u32 s{sC}, 9'); a(f's_cselect_b32 s{sC}, 0, s{sC}')
    a(f's_add_u32 s{sI}, s{sI}, 1'); a(f's_cmp_eq_u32 s{sI}, 1'); a('s_cbranch_scc1 L_xw')
    if cfg.stamps:
        a(f's_add_u32 s{sT}, s{sI}, 40'); hstamp(a, cfg, f's{sT}')
    a('s_waitcnt vmcnt(20)')
    if cfg.stamps:
        a(f's_add_u32 s{sT}, s{sI}, 20'); hstamp(a, cfg, f's{sT}')
    a('s_barrier')
    hstamp(a, cfg, f's{sI}')
    a(f's_cmp_lt_u32 s{sI}, 9'); a('s_cbranch_scc1 L_xw')
    a('s_waitcnt vmcnt(0)')
    hstamp(a, cfg, 30)
    a('s_barrier')
    hstamp(a, cfg, 10)
    a('s_branch L_h9')

def nonce_wait(a, vn, vz, lbl):
    a(f's_mov_b32 s{sI}, 0')
    a.label(lbl)
    a(f'v_cmp_eq_u32 vcc, 0, v{vn}')
    a(f's_cbranch_vccz {lbl}_d')
    a('s_sleep 2')
    a(f'buffer_load_dwordx2 v[{vn}:{vn+1}], v{vz}, s[{SDBG}:{SDBG+3}], 0 offen sc1')
    a(f's_add_u32 s{sI}, s{sI}, 1')
    a('s_waitcnt vmcnt(0)')
    a(f's_cmp_lt_u32 s{sI}, 0x100000'); a(f's_cbranch_scc1 {lbl}')
    a.label(lbl + '_d')

def helper_kv(a, cfg):
    lane = 1; t0, t1, t2, t3 = 2, 3, 4, 5
    VK, VV, VD, VZ, VT, VTH, VL, VP, VF = 8, 12, 16, 18, 19, 20, 21, 22, 32
    nt = ' nt' if cfg.kv_nt else ''
    a(f'v_lshrrev_b32 v{t2}, 4, v{lane}')
    a(f'v_and_b32 v{t3}, 15, v{lane}')
    a(f's_lshl_b32 s{sXL}, s{sHH}, 13')
    a(f'v_lshl_add_u32 v{t1}, v{t2}, 8, s{sXL}')
    a(f'v_xor_b32 v{t0}, v{t2}, v{t3}')
    a(f'v_lshl_add_u32 v{VK}, v{t0}, 4, v{t1}')
    for j in range(1, 4): a(f'v_xor_b32 v{VK+j}, {(j << 6) | ((j >> 1) << 12)}, v{VK}')
    a(f'v_lshlrev_b32 v{t0}, 1, v{t2}')
    a(f'v_xor_b32 v{t0}, v{t0}, v{t3}')
    a(f'v_lshl_add_u32 v{VV}, v{t0}, 4, v{t1}')
    for j in range(1, 4): a(f'v_xor_b32 v{VV+j}, {((j & 1) << 7) | ((j >> 1) << 12)}, v{VV}')
    a(f'v_mov_b32 v{VZ}, 0')
    a(f's_lshl_b32 s{sT}, s{sB}, 5'); a(f's_add_u32 s{sT}, s{sT}, s{sH}'); a(f's_lshl_b32 s{sT}, s{sT}, 17')
    a('s_waitcnt lgkmcnt(0)')
    a(f's_add_u32 s{SK}, s6, s{sT}'); a(f's_addc_u32 s{SK+1}, s7, 0'); a(f's_mov_b32 s{SK+2}, 131072'); a(f's_mov_b32 s{SK+3}, 0x00020000')
    a(f's_add_u32 s{SV}, s8, s{sT}'); a(f's_addc_u32 s{SV+1}, s9, 0'); a(f's_mov_b32 s{SV+2}, 131072'); a(f's_mov_b32 s{SV+3}, 0x00020000')
    srd(a, SDBG, 16, 256)
    if cfg.touch:
        a(f'v_lshlrev_b32 v{t0}, 12, v{lane}')
        a(f's_cmp_eq_u32 s{sHH}, 0'); a(f's_cselect_b32 s{SK+2}, 131072, 0'); a(f's_cselect_b32 s{SV+2}, 0, 131072')
        a(f'buffer_load_dword v40, v{t0}, s[{SK}:{SK+3}], 0 offen sc1')
        a(f'buffer_load_dword v41, v{t0}, s[{SV}:{SV+3}], 0 offen sc1')
        a(f's_mov_b32 s{SK+2}, 131072'); a(f's_mov_b32 s{SV+2}, 131072')
    hstamp(a, cfg, 61)
    a(f's_or_b32 s{sT}, s2, s{sHH}'); a(f's_cmp_lg_u32 s{sT}, 0'); a('s_cbranch_scc1 L_kv0')
    a(f's_memrealtime s[{sKX+1}:{sKX+2}]')
    a('s_waitcnt lgkmcnt(0)')
    a(f's_or_b32 s{sKX+1}, s{sKX+1}, 1')
    a(f'v_mov_b32 v{VD}, s{sKX+1}'); a(f'v_mov_b32 v{VD+1}, s{sKX+2}')
    a('s_mov_b64 exec, 1')
    a(f'buffer_store_dwordx2 v[{VD}:{VD+1}], v{VZ}, s[{SDBG}:{SDBG+3}], 0 offen sc1')
    a('s_mov_b64 exec, -1')
    a.label('L_kv0')
    srd(a, SWO, 12, 4096*1152)
    srd(a, SWS, 18, 268435456)
    a(f'v_lshlrev_b32 v{VL}, 4, v{lane}')
    a(f's_movk_i32 s{sT}, 7282'); a(f's_movk_i32 s{sT2}, 1008')
    a(f'v_mul_u32_u24 v{t1}, s{sT}, v{lane}')
    for p in range(9):
        if p: a(f'v_add_u32 v{t0}, {64*7282*p}, v{t1}')
        a(f'v_lshrrev_b32 v{t0}, 16, v{t0 if p else t1}')
        a(f'v_mad_u32_u24 v{VP+p}, v{t0}, s{sT2}, v{VL}')
    a(f's_lshl_b32 s{sWD}, s{sHH}, 14'); a(f's_add_u32 s{sWD}, s{sWD}, {8*U}')
    a(f'v_lshrrev_b32 v{t0}, 2, v{lane}'); a(f'v_mul_u32_u24 v{t0}, 144, v{t0}'); a(f'v_and_b32 v{t1}, 3, v{lane}')
    a(f'v_lshl_add_u32 v{t0}, v{t1}, 3, v{t0}'); a(f'v_add_u32 v{VT}, s{sWD}, v{t0}')
    a(f'v_bfe_u32 v{t1}, v{lane}, 1, 1'); a(f'v_mul_u32_u24 v{t1}, {32*144 - 16}, v{t1}'); a(f'v_add_u32 v{VTH}, v{VT}, v{t1}')
    a(f's_and_b32 s{sCS}, s2, 3'); a(f's_lshl_b32 s{sCS}, s{sCS}, 1'); a(f's_add_u32 s{sCS}, s{sCS}, s{sHH}')
    a(f's_lshr_b32 s{sR}, s2, 2')
    a(f's_mul_i32 s{sO}, s{sR}, {64*1152}'); a(f's_mul_i32 s{sT}, s{sCS}, 144'); a(f's_add_u32 s{sO}, s{sO}, s{sT}')
    a(f's_mul_i32 s{sWB}, s{sCS}, 589824'); a(f's_lshr_b32 s{sT}, s{sR}, 3'); a(f's_mul_i32 s{sT}, s{sT}, {9*8192}'); a(f's_add_u32 s{sWB}, s{sWB}, s{sT}')
    a(f's_and_b32 s{sT}, s{sR}, 7'); a(f's_lshl_b32 s{sT}, s{sT}, 10'); a(f's_add_u32 s{sWB}, s{sWB}, s{sT}'); a(f's_add_u32 s{sWB}, s{sWB}, {PW_OFF}')
    if cfg.touch:
        a('s_mov_b64 exec, 3')
        a(f'v_mul_u32_u24 v{t0}, 65536, v{lane}' if False else f'v_lshlrev_b32 v{t0}, 16, v{lane}')
        a(f'buffer_load_dword v42, v{t0}, s[{SWO}:{SWO+3}], s{sO} offen sc1')
        a(f'buffer_load_dword v43, v{t0}, s[{SWS}:{SWS+3}], s{sWB} offen sc1')
        a('s_mov_b64 exec, -1')
    def item(it):
        if it == 'pl':
            for p in range(9):
                if p % 4 == 0:
                    a(f's_add_u32 m0, s{sWD}, {p*1024}'); a(f's_add_u32 s{sT}, s{sO}, {p*1024}')
                a(f'buffer_load_dwordx4 v{VP+p}, s[{SWO}:{SWO+3}], s{sT} offen offset:{(p & 3)*1024} lds')
        elif it == 'non':
            a(f'buffer_load_dwordx2 v[{VD}:{VD+1}], v{VZ}, s[{SDBG}:{SDBG+3}], 0 offen sc1')
        elif it == 'ps':
            a('s_waitcnt vmcnt(0)')
            for f in range(9):
                for hf in range(2):
                    d = VF + 4*f + 2*hf
                    if f < 8: a(f'ds_read_b64_tr_b16 v[{d}:{d+1}], v{VT} offset:{(f >> 2)*32*144 + hf*16*144 + (f & 3)*32}')
                    else: a(f'ds_read_b64_tr_b16 v[{d}:{d+1}], v{VTH} offset:{hf*16*144 + 128}')
            for f in range(9):
                a(f's_add_u32 s{sT}, s{sWB}, {f*8192}')
                a(f's_waitcnt lgkmcnt({min(15, 16 - 2*f)})')
                a(f'buffer_store_dwordx4 {vr(VF + 4*f)}, v{VL}, s[{SWS}:{SWS+3}], s{sT} offen sc1')
        elif it == 'pw':
            a('s_waitcnt vmcnt(0)')
            nonce_wait(a, VD, VZ, 'L_kv_non')
        elif it == 'pf':
            a(f's_cmp_lg_u32 s{sHH}, 0'); a('s_cbranch_scc1 L_kv_nf')
            a(f's_and_b32 s{sT}, s2, 3'); a(f's_lshl_b32 s{sT}, s{sT}, 6'); a(f's_add_u32 s{sT}, s{sT}, s{sR}'); a(f's_lshl_b32 s{sT}, s{sT}, 3'); a(f's_add_u32 s{sT}, s{sT}, {PFLAG_OFF}')
            a('s_mov_b64 exec, 1')
            a(f'buffer_store_dwordx2 v[{VD}:{VD+1}], v{VZ}, s[{SWS}:{SWS+3}], s{sT} offen sc1')
            a('s_mov_b64 exec, -1')
            a.label('L_kv_nf')
        elif it.startswith('kv'):
            j = int(it[2:])
            a(f's_mov_b32 s{sT}, {j*16384}')
            for (unit, srdn, vb) in ((KUNIT[j], SK, VK), (VUNIT[j], SV, VV)):
                for p in range(8):
                    if p % 4 == 0: a(f's_add_u32 m0, s{sXL}, {unit*U + p*1024}'); a('s_nop 0')
                    a(f'buffer_load_dwordx4 v{vb + (p >> 1)}, s[{srdn}:{srdn+3}], s{sT} offen offset:{(p & 3)*1024}{nt} lds')
    for k in range(10):
        for it in cfg.ksched.get(k, []): item(it)
        hstamp(a, cfg, 40 + k)
        if k < 9:
            a('s_barrier')
            hstamp(a, cfg, k)
    a('s_waitcnt vmcnt(40)')
    hstamp(a, cfg, 29)

def op_consts(a, t0):
    a(f'v_mbcnt_lo_u32_b32 v{t0}, -1, 0'); a(f'v_mbcnt_hi_u32_b32 v{t0}, -1, v{t0}')
    a(f'v_lshlrev_b32 v{VL16}, 4, v{t0}')
def op_consts2(a):
    a(f's_lshl_b32 s{sT}, s{sG}, 10')
    a(f'v_add_u32 v{VLD}, s{sT}, v{VL16}')
    a(f'v_add_u32 v{VLD+1}, 65536, v{VLD}')
    a(f'v_add_u32 v{VLD+2}, 131072, v{VLD}')

def op_scalars(a, cfg):
    if cfg.cmap == 0:
        a(f's_and_b32 s{sR}, s2, 7'); a(f's_lshl_b32 s{sR}, s{sR}, 2'); a(f's_bfe_u32 s{sT}, s2, 0x20003'); a(f's_add_u32 s{sR}, s{sR}, s{sT}')
        a(f's_lshr_b32 s{sCS}, s2, 5')
    else:
        a(f's_and_b32 s{sR}, s2, 6'); a(f's_lshl_b32 s{sR}, s{sR}, 2'); a(f's_bfe_u32 s{sT}, s2, 0x30003'); a(f's_add_u32 s{sR}, s{sR}, s{sT}')
        a(f's_lshr_b32 s{sCS}, s2, 6'); a(f's_and_b32 s{sT}, s2, 1'); a(f's_lshl_b32 s{sT}, s{sT}, 2'); a(f's_add_u32 s{sCS}, s{sCS}, s{sT}')
    a(f's_and_b32 s{sT}, s{sR}, 3'); a(f's_mul_i32 s{sT}, s{sT}, {cfg.rotr}'); a(f's_mul_i32 s{sRT}, s{sCS}, {cfg.rotc}'); a(f's_add_u32 s{sRT}, s{sRT}, s{sT}'); a(f's_and_b32 s{sRT}, s{sRT}, {cfg.rotm}')
    a(f's_and_b32 s{sT2}, s{sR}, {cfg.swap}'); a(f's_lshl_b32 s{sT2}, s{sT2}, 2'); a(f's_xor_b32 s{sG}, s{sT2}, s{sW}')
    a(f's_mul_i32 s{sWD}, s{sCS}, 589824'); a(f's_add_u32 s{sWD}, s{sWD}, {PW_OFF}')
    a(f's_mul_i32 s{sT}, s{sRT}, 73728'); a(f's_add_u32 s{sWD}, s{sWD}, s{sT}')
    a(f's_lshl_b32 s{sT}, s{sG}, 10'); a(f's_add_u32 s{sWB}, s{sWD}, s{sT}')
    a(f's_lshl_b32 s{sT}, s{sW}, 11'); a(f's_add_u32 s{sWD}, s{sWD}, s{sT}')
    a(f's_mul_i32 s{sO}, s{sR}, {3*131072}'); a(f's_lshl_b32 s{sT}, s{sG}, 11'); a(f's_add_u32 s{sO}, s{sO}, s{sT}')
    a(f's_lshl_b32 s{sT}, s{sRT}, 14'); a(f's_add_u32 s{sO}, s{sO}, s{sT}')
    a(f's_add_u32 s{sO+1}, s{sO}, 131072'); a(f's_add_u32 s{sO+2}, s{sO}, 262144')

class Wrap:
    cur = None
def wrapc(a, s, force=False):
    if Wrap.cur != s or force:
        a(f's_cmp_ge_u32 s{sRT}, {8 - s}'); a(f's_cselect_b32 s{sOE}, {(s - 8)*73728 & 0xffffffff:#x}, {s*73728}' if s == 0 else f's_cselect_b32 s{sOE}, 589824, 0')
        if s: a(f's_sub_u32 s{sOE}, {s*73728}, s{sOE}')
        Wrap.cur = s
def w_load(a, vm, r, d=None):
    wrapc(a, r // 9)
    a(f's_add_u32 s{sT}, s{sWB}, s{sOE}')
    if r % 9: a(f's_add_u32 s{sT}, s{sT}, {(r % 9)*8192}')
    a(f'buffer_load_dwordx4 {vr(WROW(r) if d is None else d)}, v{VL16}, s[{SWS}:{SWS+3}], s{sT} offen sc1')
    vm.issue(('w', r))
def vmwait(a, vm, pred):
    n = vm.need(pred)
    assert n is not None
    if n < vm.done:
        a(f's_waitcnt vmcnt({min(n, 63)})'); vm.done = min(n, 63)
class VM2(g1.VM):
    def __init__(s): super().__init__(); s.done = 10**6
    def issue(s, tag): super().issue(tag); s.done += 1

def helper_p2(a, cfg):
    nt = ' nt' if cfg.kv_nt else ''
    vm = VM2()
    for j in range(3):
        for k in 'KV':
            for _ in range(8): vm.issue((k, j))
    def kvq(j):
        a(f's_mov_b32 s{sT}, {j*16384}')
        for (k, unit, srdn, vb) in (('K', KUNIT[j], SK, VKQ), ('V', VUNIT[j], SV, VVQ)):
            a(f's_add_u32 m0, s{sXL}, {unit*U}'); a('s_nop 0')
            for p in range(4):
                a(f'buffer_load_dwordx4 v{vb + (p >> 1)}, s[{srdn}:{srdn+3}], s{sT} offen offset:{p*1024}{nt} lds')
                vm.issue((k, j))
    def item(it):
        if it == 'chk':
            a(f's_cmp_ge_u32 s{sW}, 2'); a('s_cbranch_scc1 L_h_nochk')
            a(f'v_mov_b32 v{VHT}, 0')
            a(f'buffer_load_dwordx2 v[{VNON}:{VNON+1}], v{VHT}, s[{SDBG}:{SDBG+3}], 0 offen sc1')
            a(f'v_lshrrev_b32 v{VHT+1}, 1, v{VL16}')
            a(f's_lshr_b32 s{sT}, s{sCS}, 1'); a(f's_lshl_b32 s{sT}, s{sT}, 9'); a(f's_add_u32 s{sT}, s{sT}, {PFLAG_OFF}')
            a(f'buffer_load_dwordx2 v[{VHT+2}:{VHT+3}], v{VHT+1}, s[{SWS}:{SWS+3}], s{sT} offen sc1')
            a('s_waitcnt vmcnt(0)')
            nonce_wait(a, VNON, VHT, 'L_h_non')
            a(f's_mov_b32 s{sI}, 0')
            a.label('L_h_chk')
            a(f'v_cmp_ne_u64 vcc, v[{VHT+2}:{VHT+3}], v[{VNON}:{VNON+1}]')
            a('s_cbranch_vccz L_h_chkd')
            a('s_sleep 2')
            a(f'buffer_load_dwordx2 v[{VHT+2}:{VHT+3}], v{VHT+1}, s[{SWS}:{SWS+3}], s{sT} offen sc1')
            a(f's_add_u32 s{sI}, s{sI}, 1')
            a('s_waitcnt vmcnt(0)')
            a(f's_cmp_lt_u32 s{sI}, 0x100000'); a('s_cbranch_scc1 L_h_chk')
            a.label('L_h_chkd')
            if cfg.inv:
                a(f's_cmp_lg_u32 s{sW}, 0'); a('s_cbranch_scc1 L_h_nochk')
                a('buffer_inv sc1')
            a.label('L_h_nochk')
        elif it.startswith('kv'): kvq(int(it[2:]))
        elif it[0] == 'w':
            r0, r1 = map(int, it[1:].split('-'))
            for r in range(r0, r1): w_load(a, vm, r)
        elif it[0] == 'u':
            i = int(it[1:])
            for hr in range(2):
                r = 45 + 2*i + hr
                wrapc(a, r // 9)
                a(f's_lshr_b32 s{sT}, s{sXL}, 1'); a(f's_add_u32 m0, s{sT}, {UORD[i]*U + hr*8192}')
                a(f's_add_u32 s{sT}, s{sWD}, s{sOE}')
                if r % 9: a(f's_add_u32 s{sT}, s{sT}, {(r % 9)*8192}')
                for p in range(2):
                    a(f'buffer_load_dwordx4 v{VL16}, s[{SWS}:{SWS+3}], s{sT} offen offset:{p*1024} sc1 lds')
                    vm.issue(('u', i))
    Wrap.cur = None
    a.label('L_h9')
    a('s_barrier')
    hstamp(a, cfg, 9)
    t0, t1, t2, t3 = VHT, VHT+1, VHT+2, VHT+3
    op_scalars(a, cfg)
    op_consts(a, t0)
    op_consts2(a)
    a(f's_lshl_b32 s{sXL}, s{sW}, 12')
    a(f'v_lshrrev_b32 v{t2}, 4, v{t0}')
    a(f'v_and_b32 v{t3}, 15, v{t0}')
    a(f'v_lshl_add_u32 v{t1}, v{t2}, 8, s{sXL}')
    a(f'v_xor_b32 v{VKQ}, v{t2}, v{t3}')
    a(f'v_lshl_add_u32 v{VKQ}, v{VKQ}, 4, v{t1}')
    a(f's_lshl_b32 s{sT}, s{sHH}, 7')
    a(f'v_xor_b32 v{VKQ}, s{sT}, v{VKQ}')
    a(f'v_xor_b32 v{VKQ+1}, 64, v{VKQ}')
    a(f'v_lshlrev_b32 v{VVQ}, 1, v{t2}')
    a(f'v_xor_b32 v{VVQ}, v{VVQ}, v{t3}')
    a(f'v_lshl_add_u32 v{VVQ}, v{VVQ}, 4, v{t1}')
    a(f'v_xor_b32 v{VVQ+1}, 128, v{VVQ}')
    a(f'v_and_b32 v{VPL}, 31, v{t0}'); a(f'v_lshlrev_b32 v{VPL}, 8, v{VPL}')
    a(f's_lshl_b32 s{sT}, s{sB}, 5'); a(f's_add_u32 s{sT}, s{sT}, s{sH}'); a(f's_lshl_b32 s{sT}, s{sT}, 17')
    a(f's_add_u32 s{SK}, s6, s{sT}'); a(f's_addc_u32 s{SK+1}, s7, 0'); a(f's_mov_b32 s{SK+2}, 131072'); a(f's_mov_b32 s{SK+3}, 0x00020000')
    a(f's_add_u32 s{SV}, s8, s{sT}'); a(f's_addc_u32 s{SV+1}, s9, 0'); a(f's_mov_b32 s{SV+2}, 131072'); a(f's_mov_b32 s{SV+3}, 0x00020000')
    srd(a, SDBG, 16, 256)
    srd(a, SWS, 18, 268435456)
    a(f'v_mov_b32 v{VNON}, 0'); a(f'v_mov_b32 v{VNON+1}, 0')
    for k in range(9, 18):
        for it in cfg.sched.get(k, []): item(it)
        hstamp(a, cfg, 40 + k + 1)
        i = k - 9
        if i < 8: vmwait(a, vm, lambda t: t == ('V', i) or t == ('K', i+1))
        hstamp(a, cfg, 20 + k + 1)
        a('s_barrier')
        hstamp(a, cfg, k + 1)
    redo_check(a, VHT, 'L_h_redo')
    for it in cfg.sched.get(18, []): item(it)
    hstamp(a, cfg, 39)
    st2(a, cfg, 2)
    a('s_barrier')
    st2(a, cfg, 3)
    a(f's_cmp_lg_u32 s{sW}, 0'); a('s_cbranch_scc1 L_h_nosig')
    a(f's_lshl_b32 s{sT}, s{sB}, 5'); a(f's_add_u32 s{sT}, s{sT}, s{sH}'); a(f's_lshl_b32 s{sT}, s{sT}, 8'); a(f's_add_u32 s{sT}, s{sT}, {FLAG_OFF}')
    a('s_mov_b64 exec, 1')
    a(f'buffer_store_dwordx2 v[{VNON}:{VNON+1}], v{VPL}, s[{SWS}:{SWS+3}], s{sT} offen sc1')
    a('s_mov_b64 exec, -1')
    a.label('L_h_nosig')
    hstamp(a, cfg, 19)
    hstamp_store(a, cfg)
    for it in cfg.sched.get(19, []): item(it)
    a(f's_setprio {cfg.hprio}')
    a(f's_cmp_lg_u32 s{sW}, 1'); a('s_cbranch_scc1 L_h_np')
    a(f's_lshr_b32 s{sT}, s{sR}, 2'); a(f's_lshl_b32 s{sT}, s{sT}, 13'); a(f's_add_u32 s{sT}, s{sT}, {FLAG_OFF}')
    a(f's_mov_b32 s{sI}, 0')
    a.label('L_h_poll')
    a(f'buffer_load_dwordx2 v[{VHT}:{VHT+1}], v{VPL}, s[{SWS}:{SWS+3}], s{sT} offen sc1')
    a(f's_add_u32 s{sI}, s{sI}, 1')
    a('s_waitcnt vmcnt(0)')
    a(f'v_cmp_ne_u64 vcc, v[{VHT}:{VHT+1}], v[{VNON}:{VNON+1}]')
    a('s_cbranch_vccz L_op')
    a('s_sleep 1')
    a(f's_cmp_lt_u32 s{sI}, 0x100000'); a('s_cbranch_scc1 L_h_poll')
    a.label('L_h_np')
    a('s_waitcnt vmcnt(0)')
    a('s_branch L_op')
    a.label('L_h_redo')
    a('s_waitcnt vmcnt(0)')
    a('s_barrier')
    for j in range(3): kvq(j)
    a('s_waitcnt vmcnt(0)')
    a('s_branch L_h9')

def oproj(a, cfg):
    a.label('L_op')
    srd(a, SOUT, 14, 1536*1152)
    a(f's_mov_b32 s{sN}, 16384')
    Wrap.cur = None
    st2(a, cfg, 4)
    a('s_barrier')
    st2(a, cfg, 5)
    vm = VM2(); st = Stream(a)
    pool = list(OPOOL); dest = {}; nx = [0]
    home = {r: WROW(r) for r in range(45)}
    first = {0: ACC(0, 5), 1: ACC(1, 5)}
    stream = list(range(65, 72))
    def oload(f, d):
        dest[f] = d; s, r = divmod(f, 6); par, qt = divmod(r, 3)
        a(f'buffer_load_dwordx4 {vr(d)}, v{VL16}, s[{SWS}:{SWS+3}], s{sO+qt} offen offset:{par*1024} sc1'); vm.issue(('o', f))
        if par and s < 7:
            if qt == 0: a(f's_cmp_eq_u32 s{sRT}, {7 - s}'); a(f's_cselect_b32 s{sJ}, {(-7*16384) & 0xffffffff:#x}, s{sN}')
            a(f's_add_u32 s{sO+qt}, s{sO+qt}, s{sJ}')
    def issue(keep=0):
        while nx[0] < 48 and (nx[0] in first or len(pool) > keep):
            f = nx[0]
            oload(f, first[f] if f in first else pool.pop(0))
            nx[0] += 1
    def lread(r):
        d = pool.pop(0); home[r] = d
        ad = UORD[(r - 45) >> 1]*U + ((r - 45) & 1)*8192
        st.read(f'ds_read_b128 {vr(d)}, v{VLD + (ad >> 16)} offset:{ad & 65535}', ('w', r))
    issue()
    def mf(s, par, qt, j):
        r = s*9 + (par*4 + j if j < 4 else 8)
        acc = ACC(qt, j if j < 4 else 4 + par)
        c = '0' if s == 0 and (par == 0 or j == 4) else vr(acc)
        a(f'{MF} {vr(acc)}, {vr(home[r])}, {vr(dest[s*6 + par*3 + qt])}, {c}')
    for j in range(5):
        for par in range(2):
            for qt in range(3):
                if j == 0: vmwait(a, vm, lambda t: t == ('o', par*3 + qt))
                mf(0, par, qt, j)
                if j == 4 and par*3 + qt >= 2:
                    pool.append(dest[par*3 + qt]); issue()
    for s in range(1, 8):
        if s == 4: st2(a, cfg, 6)
        for par in range(2):
            for qt in range(3):
                f = s*6 + par*3 + qt
                vmwait(a, vm, lambda t: t == ('o', f))
                if qt == 0:
                    rows = [s*9 + par*4 + j for j in range(4)] + [s*9 + 8]
                    lr = [('w', r) for r in rows if 45 <= r < 65]
                    if lr: st.wait(lr)
                    sr = [r for r in rows if r >= 65]
                    if sr: vmwait(a, vm, lambda t: t[0] == 'w' and t[1] in sr)
                for j in range(5): mf(s, par, qt, j)
                pool.append(dest[f])
                if qt == 2:
                    pool += [home[s*9 + par*4 + j] for j in range(4)]
                    if par: pool.append(home[s*9 + 8])
                    while stream and pool:
                        r = stream.pop(0); home[r] = pool.pop(0); w_load(a, vm, r, home[r])
                    want = [r for r in [(s+1)*9 + par*4 + j for j in range(4)] + ([(s+1)*9 + 8] if par == 0 else []) if 45 <= r < 65]
                    for r in want: lread(r)
                issue()
    st2(a, cfg, 7)
    t2 = 2
    for t in sorted(range(12), key=lambda t: t % 3): a(f'ds_write_b128 v{VLD + (t >> 3)}, {vr(180 + 4*t)} offset:{(t & 7)*8192}')
    a('s_mov_b32 exec_hi, 0')
    for qt in range(3): a(f'ds_write_b128 v{VLD+1}, {vr(ACC(qt, 4))} offset:{(4 + qt)*8192}')
    a('s_not_b64 exec, exec')
    for qt in range(3): a(f'ds_write_b128 v{VLD+1}, {vr(ACC(qt, 5))} offset:{(4 + qt)*8192}')
    a('s_mov_b64 exec, -1')
    sq = sKX
    a(f's_lshl_b32 s{sT}, s{sW}, 13')
    a(f'v_add_u32 v{t2}, s{sT}, v{VL16}'); a(f'v_add_u32 v{t2+1}, 65536, v{t2}')
    a(f's_mul_i32 s{sCS}, s{sCS}, 144')
    for tt in range(2):
        a(f's_add_u32 s{sT}, s{sW}, {8*tt}')
        a(f's_mul_i32 s{sT2}, s{sT}, 86'); a(f's_lshr_b32 s{sT2}, s{sT2}, 8')
        a(f's_sub_u32 s{sJ}, s{sR}, s{sT2}'); a(f's_mul_i32 s{sJ}, s{sJ}, 3'); a(f's_add_u32 s{sT}, s{sT}, s{sJ}')
        a(f's_mul_i32 s{sT}, s{sT}, {16*1152}')
        a(f's_lshl_b32 s{sT2}, s{sT2}, 5'); a(f's_add_u32 s{sT}, s{sT}, s{sT2}'); a(f's_add_u32 s{sq+tt}, s{sT}, s{sCS}')
    a(f'v_bfe_u32 v4, v{VL16}, 4, 4'); a('v_mul_u32_u24 v4, 1152, v4'); a(f'v_lshrrev_b32 v5, 8, v{VL16}'); a('v_lshl_add_u32 v4, v5, 3, v4')
    a('s_waitcnt lgkmcnt(0)')
    a('s_barrier')
    st2(a, cfg, 8)
    for tt in range(2):
        for p in range(8): a(f'ds_read_b128 {vr(8 + (tt*8+p)*4)}, v{t2+tt} offset:{p*1024}')
    for tt in range(2):
        a(f's_waitcnt lgkmcnt({8 - 8*tt})')
        b = 8 + tt*32
        for stp in (16, 8, 4):
            for r in range(0, stp, 2): a(f'v_pk_add_f32 v[{b+r}:{b+r+1}], v[{b+r}:{b+r+1}], v[{b+stp+r}:{b+stp+r+1}]')
        if tt:
            a(f's_cmp_lt_u32 s{sW}, 4'); a('s_cbranch_scc1 L_full')
            a(f's_cmp_eq_u32 s{sW}, 7'); a('s_cbranch_scc1 L_fin')
            for r in range(4): a(f'v_mov_b32 v{b+4+r}, v{b+r}')
            a('s_nop 1')
            for r in range(4): a(f'v_permlane32_swap_b32 v{b+r}, v{b+4+r}')
            a('s_nop 0')
            for r in range(4): a(f'v_add_f32 v{b+r}, v{b+r}, v{b+4+r}')
            a('s_mov_b32 exec_hi, 0')
            a.label('L_full')
        a(f'v_cvt_pk_bf16_f32 v{b}, v{b}, v{b+1}'); a(f'v_cvt_pk_bf16_f32 v{b+1}, v{b+2}, v{b+3}')
        a(f'buffer_store_dwordx2 v[{b}:{b+1}], v4, s[{SOUT}:{SOUT+3}], s{sq+tt} offen')
    a.label('L_fin')
    if cfg.stamps:
        a('s_mov_b64 exec, -1')
        a('s_waitcnt vmcnt(0)')
        st2(a, cfg, 9)
        a(f's_memrealtime s[{sMT}:{sMT+1}]')
        a('s_waitcnt lgkmcnt(0)')
        a('v_mov_b32 v6, 0')
        for i in range(10): a(f'v_writelane_b32 v6, s{S2+2*i}, {i}')
        a(f'v_writelane_b32 v6, s{sMT+2}, 14'); a(f'v_writelane_b32 v6, s{sMT}, 15')
        a(f'v_lshrrev_b32 v7, 2, v{VL16}')
        a(f's_lshl_b32 s{sT}, s2, 9'); a(f's_lshl_b32 s{sT2}, s{sW}, 6'); a(f's_add_u32 s{sT}, s{sT}, s{sT2}'); a(f's_add_u32 s{sT}, s{sT}, {STAMP_OFF + (1 << 20)}')
        a('s_mov_b64 exec, 0xffff')
        a(f'buffer_store_dword v6, v7, s[{SWS}:{SWS+3}], s{sT} offen')
    a('s_endpgm')

class Stream:
    def __init__(s, a): s.a = a; s.q = []
    def read(s, txt, tag): s.a(txt); s.q.append(tag)
    def wait(s, tags):
        last = -1
        for i, t in enumerate(s.q):
            if t in tags: last = i
        assert last >= 0, tags
        n = len(s.q) - 1 - last
        s.a(f's_waitcnt lgkmcnt({min(n, 15)})')

def conv_list(k):
    u, qt = divmod(k, 3)
    s0 = QA(qt, u, 0); s1 = s0 + 4
    m = f's[{sODD}:{sODD+1}]'
    l = [f'v_mul_f32 v{s0+r}, s{sSCALE}, v{s0+r}' for r in range(8)]
    l += [f'v_cvt_pk_bf16_f32 v{s0}, v{s0}, v{s0+1}', f'v_cvt_pk_bf16_f32 v{s0+1}, v{s0+2}, v{s0+3}',
          f'v_cvt_pk_bf16_f32 v{s1}, v{s1}, v{s1+1}', f'v_cvt_pk_bf16_f32 v{s1+1}, v{s1+2}, v{s1+3}',
          f'v_cndmask_b32 v{s0+2}, v{s1}, v{s0}, {m}', f'v_cndmask_b32 v{s0+3}, v{s1+1}, v{s0+1}, {m}',
          f'v_cndmask_b32 v{s0}, v{s0}, v{s1}, {m}', f'v_cndmask_b32 v{s0+1}, v{s0+1}, v{s1+1}, {m}']
    return l

def sm_gaps(pb):
    d = {}
    for gi in range(6):
        T, qt = divmod(gi, 3)
        s = 13 + 8*gi; S = S_(qt, T); P = P_(pb, qt) + 2*T
        for r in range(4):
            d.setdefault(s+2*r, []).append(f'v_exp_f32 v{S+r}, v{S+r}')
            d.setdefault(s+2*r+1, []).append(f'v_add_f32 v{L_(qt)}, v{L_(qt)}, v{S+r}')
        d[s+3].append(f'v_cvt_pk_bf16_f32 v{P}, v{S}, v{S+1}')
        d[s+7].append(f'v_cvt_pk_bf16_f32 v{P+1}, v{S+2}, v{S+3}')
    return d

def kread(f, half):
    T, u = divmod(f, 4)
    return f'ds_read_b128 {vr(R_(f))}, v{AK+u} offset:{half*8192 + T*1024}'
def vread(v, part, half):
    d = R_(v) + 2*part
    return f'ds_read_b64_tr_b16 v[{d}:{d+1}], v{AV+v} offset:{half*8192 + part*1024}'

def compute(a, cfg):
    lane = TMP+4; t0, t1, t2, t3 = 192, 193, 194, 195
    r_, c_, t4 = 196, 197, 198
    LA = cfg.LA
    a(f's_setprio {cfg.prio}')
    a(f'v_mov_b32 v{lane}, v1')
    a(f's_sub_u32 s{sHH}, s{sW}, 4')
    a(f'v_and_b32 v{t0}, 15, v{lane}')
    a(f'v_lshrrev_b32 v{t2}, 4, v{lane}')
    a(f's_mul_i32 s{sT}, s{sHH}, {48*128}')
    a(f'v_lshl_add_u32 v{t1}, v{t0}, 7, s{sT}')
    a(f'v_lshrrev_b32 v{t3}, 1, v{t0}')
    a(f'v_xor_b32 v{t3}, v{t3}, v{t2}')
    a(f'v_lshl_add_u32 v{AX}, v{t3}, 4, v{t1}')
    a(f'v_xor_b32 v{AX+1}, 64, v{AX}')
    a(f'v_and_b32 v{t1}, 3, v{t0}')
    a(f'v_lshrrev_b32 v{t3}, 2, v{t0}')
    a(f'v_lshl_add_u32 v{t1}, v{t3}, 3, v{t1}')
    a(f'v_lshlrev_b32 v{t1}, 8, v{t1}')
    a(f'v_xor_b32 v{t3}, v{t0}, v{t2}')
    a(f'v_lshl_add_u32 v{AKB}, v{t3}, 4, v{t1}')
    a(f'v_bfe_u32 v{r_}, v{lane}, 2, 2')
    a(f'v_and_b32 v{c_}, 3, v{lane}')
    a(f'v_lshl_add_u32 v{t1}, v{t2}, 3, v{r_}')
    a(f'v_lshlrev_b32 v{t1}, 8, v{t1}')
    a(f'v_and_b32 v{t0}, 1, v{t2}')
    a(f'v_lshl_or_b32 v{t3}, v{t0}, 2, v{r_}')
    a(f'v_lshlrev_b32 v{t3}, 5, v{t3}')
    a(f'v_lshl_or_b32 v{t3}, v{c_}, 3, v{t3}')
    a(f'v_add_u32 v{AVB}, v{t3}, v{t1}')
    a(f'v_and_b32 v{t3}, 1, v{r_}')
    a(f'v_xor_b32 v{t3}, v{t3}, v{c_}')
    a(f'v_lshrrev_b32 v{t4}, 1, v{r_}')
    a(f'v_lshl_or_b32 v{t3}, v{t4}, 2, v{t3}')
    a(f'v_lshl_or_b32 v{t3}, v{t0}, 3, v{t3}')
    a(f'v_lshlrev_b32 v{t3}, 4, v{t3}')
    a(f'v_and_b32 v{t4}, 1, v{c_}')
    a(f'v_lshl_or_b32 v{t3}, v{t4}, 3, v{t3}')
    a(f'v_add_u32 v{t3}, v{t3}, v{t1}')
    a(f'v_add_u32 v{t3}, {WBASE + 4*8192}, v{t3}')
    for f in range(8): a(f'v_xor_b32 v{AW+f}, {((f >> 1) << 6) | ((f & 1) << 3)}, v{t3}')
    a(f'v_cmp_eq_u32 s[{sODD}:{sODD+1}], 1, v{t0}')
    a(f's_mov_b32 s{sTHR}, {f32bits(THR):#x}')
    a(f's_mov_b32 s{sSCALE}, {f32bits(SCALE):#x}')
    a(f's_mov_b32 s{sREDO}, 0')
    a(f's_mov_b32 s{sWL}, 4'); a(f's_mov_b32 s{sXL}, 0'); a(f's_mov_b32 s{sI}, 9')
    a(f's_mul_i32 s{sOB}, s{sB}, 12'); a(f's_mul_i32 s{sT}, s{sHH}, 3'); a(f's_add_u32 s{sOB}, s{sOB}, s{sT}')
    a(f's_lshl_b32 s{sOB}, s{sOB}, 5'); a(f's_add_u32 s{sOB}, s{sOB}, s{sH}'); a(f's_lshl_b32 s{sOB}, s{sOB}, 12')
    a(f's_add_u32 s{sOB+1}, s{sOB}, 131072'); a(f's_add_u32 s{sOB+2}, s{sOB}, 262144')
    a('s_waitcnt lgkmcnt(0)')
    srd(a, SWS, 18, 268435456)
    op_scalars(a, cfg)
    if cfg.touch:
        a(f's_cmp_lg_u32 s{sW}, 4'); a('s_cbranch_scc1 L_notouch')
        srd(a, SOUT, 14, 1536*1152)
        a('s_mov_b64 exec, 0xffff')
        a(f'v_lshlrev_b32 v{TMP}, 17, v{lane}')
        a(f'buffer_load_dword v0, v{TMP}, s[{SWS}:{SWS+3}], s{sOB} offen sc1')
        a(f'v_lshlrev_b32 v{TMP+1}, 15, v{lane}')
        a(f'buffer_load_dword v1, v{TMP+1}, s[{SWS}:{SWS+3}], s{sO} offen sc1')
        a(f'v_mul_u32_u24 v{TMP+2}, 40960, v{lane}')
        a(f'buffer_load_dword v2, v{TMP+2}, s[{SWS}:{SWS+3}], s{sWB} offen sc1')
        a('s_mov_b64 exec, 3')
        a(f'v_lshlrev_b32 v{TMP+3}, 20, v{lane}')
        a(f's_mov_b32 s{sT}, {FLAG_OFF}')
        a(f'buffer_load_dword v3, v{TMP+3}, s[{SWS}:{SWS+3}], s{sT} offen sc1')
        a(f'v_mul_u32_u24 v{L_(0)}, 55000, v{lane}')
        a(f's_mul_i32 s{sT}, s{sR}, {48*1152}')
        a(f'buffer_load_dword v4, v{L_(0)}, s[{SOUT}:{SOUT+3}], s{sT} offen sc1')
        a('s_mov_b64 exec, -1')
        a.label('L_notouch')
    zr = list(range(6, 92, 2)) + list(range(96, 224, 2)) + list(range(236, 248, 2))
    for r in zr: a(f'v_pk_mov_b32 v[{r}:{r+1}], 0, 0')
    def wstep():
        return [f's_add_u32 s{sWL}, s{sWL}, 1', f's_cmp_eq_u32 s{sWL}, 7', f's_cselect_b32 s{sDW}, {(-6*8192) & 0xffffffff:#x}, s{sN}', f's_cselect_b32 s{sWL}, 0, s{sWL}']
    a(f's_mov_b32 s{sN}, 8192')
    a(f's_mov_b32 s{sJ}, {XSLOT}')
    def p1_mfma(fr, qt):
        f = fr % 16; par = f >> 3; tile = f & 7
        acc = QA(qt, tile >> 1, tile & 1)
        return f'{MF} {vr(acc)}, {vr(R_(f))}, {vr(XF(par, qt))}, {vr(acc)}'
    def wread(f, hh):
        d = R_(f) + 2*hh
        return f'ds_read_b64_tr_b16 v[{d}:{d+1}], v{AW + (f & 7)} offset:{hh*1024}'
    st = Stream(a)
    def p1_body(emit):
        for p in range(16):
            fr = p - LA
            for qt in range(3):
                if qt == 0:
                    tags = [('w', fr % 16)]
                    if fr % 8 == 0: tags += [('x', (fr % 16) >> 3, 2)]
                    if emit: st.wait(tags)
                if emit: a(p1_mfma(fr, qt))
                if qt < 2:
                    if emit: st.read(wread(p, qt), ('w', p))
                    else: st.q.append(('w', p))
                    if qt == 1 and emit: a(f'v_add_u32 v{AW + (p & 7)}, s{sDW}, v{AW + (p & 7)}')
                else:
                    xi = None
                    if p < 3: xi = (0, p)
                    elif LA + 1 <= p < LA + 4: xi = (1, p - LA - 1)
                    if xi:
                        if emit: st.read(f'ds_read_b128 {vr(XF(*xi))}, v{AX + xi[0]} offset:{xi[1]*2048}', ('x',) + xi)
                        else: st.q.append(('x',) + xi)
                        if xi[1] == 2 and emit: a(f'v_add_u32 v{AX + xi[0]}, s{sDX}, v{AX + xi[0]}')
                    if emit and p == 7:
                        for x in wstep(): a(x)
                    if emit and p == 14:
                        a(f's_sub_u32 s{sI}, s{sI}, 1')
    p1_body(False)
    a.label('L_p1')
    a('s_barrier')
    for x in wstep(): a(x)
    a(f's_add_u32 s{sXL}, s{sXL}, 1'); a(f's_cmp_eq_u32 s{sXL}, 3'); a(f's_cselect_b32 s{sDX}, {(-2*XSLOT) & 0xffffffff:#x}, s{sJ}'); a(f's_cselect_b32 s{sXL}, 0, s{sXL}')
    p1_body(True)
    a(f's_cmp_lg_u32 s{sI}, 0'); a('s_cbranch_scc1 L_p1')
    for u in range(4): a(f'v_xor_b32 v{AK+u}, {(u << 6) | (KUNIT[0]*U)}, v{AKB}')
    a('s_waitcnt vmcnt(0)')
    a('s_barrier')
    vl = []
    misc = [f'v_xor_b32 v{AV+v}, {(v << 5) | (VUNIT[0]*U)}, v{AVB}' for v in range(8)]
    misc += [f'v_pk_mov_b32 v[{r}:{r+1}], 0, 0' for r in (0, 2, 4)]
    misc += [f'v_pk_mov_b32 v[92:93], 0, 0', f'v_pk_mov_b32 v[94:95], 0, 0'] + [f'v_mov_b32 v{L_(qt)}, 0xff800000' for qt in range(3)]
    nleft = 3*LA
    for k in range(12):
        u = k // 3
        pos = (9 + 2*u) - (16 - LA)
        early = max(0, 3*(pos+1) + 3) if pos >= 0 else 0
        for x in conv_list(k): vl.append((x, early))
        if k == 2:
            for x in misc: vl.append((x, 0))
    def vidx(k): return (k+1)*16 + (len(misc) if k >= 2 else 0)
    ml = []
    for p in range(LA):
        for qt in range(3): ml.append(dict(t=p1_mfma(p - LA, qt), need=0, wait=[('w', (p - LA) % 16)] if qt == 0 else None))
    korder = [0, 1, 2, 3, 4, 5, 6, 7]
    for f in korder:
        T, u = divmod(f, 4)
        for qt in range(3):
            c = '0' if u == 0 else vr(S_(qt, T))
            ml.append(dict(t=f'{MF} {vr(S_(qt, T))}, {vr(R_(f))}, {vr(Q_(qt, u))}, {c}', need=vidx(u*3+qt) + 2 if T == 0 else 0, wait=[('k', f)] if qt == 0 else None))
    mx = []
    for qt in range(3): mx.append(f'v_max3_f32 v{L_(qt)}, v{L_(qt)}, v{S_(qt,0)}, v{S_(qt,0)+1}')
    for qt in range(3): mx.append(f'v_max3_f32 v{L_(qt)}, v{L_(qt)}, v{S_(qt,0)+2}, v{S_(qt,0)+3}')
    mx += g1.xreduce('v_max_f32', [L_(0), L_(1), L_(2)], [TMP, TMP+1, TMP+2])
    for r in range(4):
        for qt in range(3): mx.append(f'v_sub_f32 v{S_(qt,0)+r}, v{S_(qt,0)+r}, v{L_(qt)}')
    for r in range(4):
        for qt in range(3): mx.append(f'v_sub_f32 v{MN(qt)+r}, 0, v{L_(qt)}')
    for qt in range(3): mx.append(f'v_mov_b32 v{L_(qt)}, 0')
    nT0 = nleft + 12
    kr = {}
    for f in range(8):
        pos = f - (8 - LA)
        kr.setdefault(max(0, 3*(pos+1)), []).append(f)
    vi = 0
    for mi, m in enumerate(ml[:nT0]):
        for f in kr.get(mi, []): st.read(kread(f, 0), ('k', f))
        while vi < min(m['need'], len(vl)):
            assert vl[vi][1] <= mi, (vi, mi)
            a(vl[vi][0]); vi += 1
        if m['need'] > len(vl): a('s_nop 1')
        if m['wait']: st.wait(m['wait'])
        a(m['t'])
        for _ in range(2):
            if vi < len(vl) and vl[vi][1] <= mi + 1: a(vl[vi][0]); vi += 1
    assert vi == len(vl)
    a.label('L_reenter')
    xi = 0
    for j, m in enumerate(ml[nT0:]):
        if m['wait']: st.wait(m['wait'])
        a(m['t'])
        if j < 4: st.read(kread(j, 1), ('K', j))
        if j >= 3:
            for _ in range(3):
                if xi < len(mx): a(mx[xi]); xi += 1
    for f in (4, 5, 6): st.read(kread(f, 1), ('K', f))
    while xi < len(mx): a(mx[xi]); xi += 1
    sm0 = sm_gaps(0)
    t1sub = [f'v_add_f32 v{S_(qt,1)+r}, v{MN(qt)}, v{S_(qt,1)+r}' for qt in range(3) for r in range(4)]
    for gq in range(13, 48):
        for x in sm0[gq]: a(x)
        if gq % 2 == 1:
            assert t1sub or True
            if t1sub: a(t1sub.pop(0))
            else: a('s_nop 0')
    kx = [KUNIT[i] ^ KUNIT[i+1] for i in range(7)] + [0]
    vx = [VUNIT[i] ^ VUNIT[i+1] for i in range(7)] + [0]
    a(f's_mov_b32 s{sKS}, {pack4(kx):#x}'); a(f's_mov_b32 s{sVS}, {pack4(vx):#x}'); a(f's_mov_b32 s{sI}, 8')
    def half(hf):
        prev = sm_gaps(hf); cur = sm_gaps(1 - hf)
        for idx in range(48):
            f, qt = divmod(idx, 3)
            if f < 8:
                T, u = divmod(f, 4)
                c = vr(MN(qt)) if u == 0 else vr(S_(qt, T))
                a(f'{MF} {vr(S_(qt, T))}, {vr(R_(f))}, {vr(Q_(qt, u))}, {c}')
            else:
                v = f - 8
                a(f'{MF} {vr(O_(qt, v))}, {vr(R_(v))}, {vr(P_(hf, qt))}, {vr(O_(qt, v))}')
            if idx % 2 == 0:
                r = (idx + 14)//2
                if r < 8: st.read(kread(r, 1 - hf), ('K', r))
                elif r < 24: st.read(vread((r-8) >> 1, (r-8) & 1, hf), ('V', (r-8) >> 1))
                else: st.read(kread(r - 24, hf), ('K', r - 24))
            else:
                if idx == 1 and hf == 0: a('s_barrier')
                if (idx + 1) % 6 == 0:
                    f2 = ((idx + 1)//3 + 1) % 16
                    st.wait([('K', f2)] if f2 < 8 else [('V', f2 - 8)])
                if hf == 0 and idx == 3:
                    a(f's_and_b32 s{sKX}, s{sKS}, 15')
                if hf == 0 and idx == 7: a(f's_lshl_b32 s{sKX}, s{sKX}, 14')
                if hf == 0 and idx == 9: a(f's_lshr_b32 s{sKS}, s{sKS}, 4')
                if hf == 0 and idx == 13: a(f's_and_b32 s{sVX}, s{sVS}, 15')
                if hf == 0 and idx == 15: a(f's_lshl_b32 s{sVX}, s{sVX}, 14')
                if hf == 0 and idx == 19: a(f's_lshr_b32 s{sVS}, s{sVS}, 4')
                if hf == 0 and idx == 43: a(f's_sub_u32 s{sI}, s{sI}, 1')
                if hf == 0 and idx == 45: a(f's_cmp_eq_u32 s{sI}, 0')
            for x in prev.get(idx + 48, []) + cur.get(idx, []): a(x)
            if idx % 4 == 2:
                if hf == 0 and 10 <= idx <= 22:
                    u = (idx - 10)//4
                    a(f'v_xor_b32 v{AK+u}, s{sKX}, v{AK+u}')
                if hf == 1 and 10 <= idx <= 38:
                    v = (idx - 10)//4
                    a(f'v_xor_b32 v{AV+v}, s{sVX}, v{AV+v}')
    st.wait([('K', 1)])
    a.label('L_p2')
    half(0)
    a('s_cbranch_scc1 L_tail')
    q_exit = list(st.q)
    half(1)
    a('s_branch L_p2')
    a.label('L_tail')
    st2(a, cfg, 0)
    st.q = q_exit
    prev = sm_gaps(1)
    rest = [x for gq in range(48, 61) for x in prev[gq]]
    vrd = [(v, part) for v in range(8) for part in range(2)]
    for i, x in enumerate(rest):
        if i < len(vrd): st.read(vread(vrd[i][0], vrd[i][1], 1), ('V', vrd[i][0]))
        a(x)
    assert len(rest) >= len(vrd)
    fin = g1.xreduce('v_add_f32', [L_(0), L_(1), L_(2)], [TMP, TMP+1, TMP+2])
    fin += [f'v_max3_f32 v{TMP}, v{L_(0)}, v{L_(1)}, v{L_(2)}', f'v_add_f32 v{TMP+1}, v{L_(0)}, v{L_(1)}']
    fin += [f'v_rcp_f32 v{L_(qt)}, v{L_(qt)}' for qt in (0, 1)]
    fin += [f'v_cmp_nge_f32 vcc, s{sTHR}, v{TMP}', f'v_cmp_u_f32 s[{sMT}:{sMT+1}], v{TMP+1}, v{L_(2)}', f'v_rcp_f32 v{L_(2)}, v{L_(2)}']
    fin += [f'v_mbcnt_lo_u32_b32 v{lane}, -1, 0', f'v_mbcnt_hi_u32_b32 v{lane}, -1, v{lane}', f'v_lshlrev_b32 v{lane}, 4, v{lane}', f's_lshl_b32 s{sT2}, s{sHH}, 2', f's_add_u32 s{sT2}, s{sT2}, {FLAG_LDS}',
            f's_or_b64 vcc, vcc, s[{sMT}:{sMT+1}]', f's_cselect_b32 s{sT}, 1, 0', f's_andn2_b32 s{sT}, s{sT}, s{sREDO}', f'v_mov_b32 v{TMP}, s{sT2}', f'v_mov_b32 v{TMP+1}, s{sT}',
            f'ds_write_b32 v{TMP}, v{TMP+1}']
    def nrm(uu):
        l = []
        for qt in range(3):
            o0 = O_(qt, 2*uu)
            l += [f'v_mul_f32 v{o0+r}, v{o0+r}, v{L_(qt)}' for r in range(8)]
            l += [f'v_cvt_pk_bf16_f32 v{o0+r}, v{o0+2*r}, v{o0+2*r+1}' for r in range(4)]
            l += [f'buffer_store_dwordx4 {vr(o0)}, v{lane}, s[{SWS}:{SWS+3}], s{sOB+qt} offen offset:{uu*1024} sc1']
        return l
    fl = [(x, 0) for x in fin]
    for uu in range(4): fl += [(x, 6*uu + 6 + 4) for x in nrm(uu)]
    fi = 0
    for idx in range(24):
        v, qt = divmod(idx, 3)
        if qt == 0: st.wait([('V', v)])
        a(f'{MF} {vr(O_(qt, v))}, {vr(R_(v))}, {vr(P_(1, qt))}, {vr(O_(qt, v))}')
        for _ in range(3):
            if fl[fi][1] <= idx + 1:
                a(fl[fi][0])
                if fl[fi][0].startswith('ds_write'): st.q.append(('fl',))
                fi += 1
        if idx == 21:
            assert fi >= len(fin)
            a('s_waitcnt lgkmcnt(0)')
            a('s_barrier')
            a(f'v_mov_b32 v192, {FLAG_LDS}')
            a(f'ds_read_b128 {vr(192)}, v192')
    while fi < len(fl): a(fl[fi][0]); fi += 1
    st2(a, cfg, 1)
    a('s_waitcnt lgkmcnt(0)')
    a('v_or3_b32 v192, v192, v193, v194')
    a('v_or_b32 v192, v192, v195')
    a('s_nop 0')
    a(f'v_readfirstlane_b32 s{sT}, v192')
    a('s_nop 0')
    a(f's_cmp_lg_u32 s{sT}, 0')
    a('s_cbranch_scc1 L_redo')
    vm = VM2()
    vm.issue(('st',))
    a(f'v_mov_b32 v{VL16}, v{lane}')
    Wrap.cur = None
    for r in range(cfg.nraw1): w_load(a, vm, r)
    op_consts2(a)
    a(f's_setprio {cfg.oprio}')
    vmwait(a, vm, lambda t: t == ('st',))
    st2(a, cfg, 2)
    a('s_barrier')
    st2(a, cfg, 3)
    for r in range(cfg.nraw1, 45): w_load(a, vm, r)
    oproj(a, cfg)
    a.label('L_redo')
    a(f's_mov_b32 s{sREDO}, 1')
    a(f's_lshl_b32 s{sT}, s{sB}, 5'); a(f's_add_u32 s{sT}, s{sT}, s{sH}'); a(f's_lshl_b32 s{sT}, s{sT}, 17')
    a(f's_add_u32 s{SK}, s6, s{sT}'); a(f's_addc_u32 s{SK+1}, s7, 0'); a(f's_mov_b32 s{SK+2}, 131072'); a(f's_mov_b32 s{SK+3}, 0x00020000')
    a('s_waitcnt vmcnt(0)')
    a('s_barrier')
    a(f'v_lshrrev_b32 v{lane}, 4, v{lane}')
    a(f'v_and_b32 v{TMP}, 15, v{lane}'); a(f'v_lshlrev_b32 v{TMP}, 8, v{TMP}')
    a(f'v_lshrrev_b32 v{TMP+1}, 4, v{lane}'); a(f'v_lshl_add_u32 v{TMP}, v{TMP+1}, 4, v{TMP}')
    for qt in range(3): a(f'v_mov_b32 v{L_(qt)}, 0xff800000')
    for r in range(0, 96, 2): a(f'v_pk_mov_b32 v[{r}:{r+1}], 0, 0')
    a(f's_mov_b32 s{sJ}, 0')
    a.label('L_redo_max')
    for u in range(4): a(f'buffer_load_dwordx4 {vr(R_(u))}, v{TMP}, s[{SK}:{SK+3}], s{sJ} offen offset:{u*64}')
    a('s_waitcnt vmcnt(0)')
    for u in range(4):
        for qt in range(3):
            c = '0' if u == 0 else vr(S_(qt, 0))
            a(f'{MF} {vr(S_(qt, 0))}, {vr(R_(u))}, {vr(Q_(qt, u))}, {c}')
    a('s_nop 7'); a('s_nop 7')
    for x in mx[:6]: a(x)
    a(f's_add_u32 s{sJ}, s{sJ}, 4096'); a(f's_cmp_lt_u32 s{sJ}, 131072'); a('s_cbranch_scc1 L_redo_max')
    for u in range(4): a(f'v_xor_b32 v{AK+u}, {(KUNIT[7] ^ KUNIT[0])*U}, v{AK+u}')
    for v in range(8): a(f'v_xor_b32 v{AV+v}, {(VUNIT[7] ^ VUNIT[0])*U}, v{AV+v}')
    a('s_barrier')
    for f in range(8): a(kread(f, 0))
    a('s_waitcnt lgkmcnt(0)')
    for m in ml[nleft:nT0]: a(m['t'])
    a('s_branch L_reenter')

def kernel_a(cfg):
    a = Asm()
    a('s_cmp_ge_u32 s2, 256'); a('s_cbranch_scc1 L_endA')
    a('s_load_dwordx8 s[4:11], s[0:1], 0')
    a('s_load_dwordx8 s[12:19], s[0:1], 32')
    a('v_lshrrev_b32 v2, 6, v0')
    a('v_and_b32 v1, 63, v0')
    a(f'v_readfirstlane_b32 s{sW}, v2')
    if cfg.stamps:
        a(f's_memrealtime s[{sMT}:{sMT+1}]'); a(f's_memtime s[{sMT+2}:{sMT+3}]'); a('s_waitcnt lgkmcnt(0)')
        a(f'v_mov_b32 v{STV}, 0')
        a(f'v_writelane_b32 v{STV}, s{sMT}, 62'); a(f'v_writelane_b32 v{STV}, s{sMT+2}, 60')
    a(f's_lshr_b32 s{sT}, s2, 3')
    if cfg.mapping == 0:
        a(f's_and_b32 s{sH}, s2, 7'); a(f's_lshl_b32 s{sH}, s{sH}, 2'); a(f's_and_b32 s{sT}, s{sT}, 3')
        a(f's_add_u32 s{sH}, s{sH}, s{sT}')
        a(f's_lshr_b32 s{sB}, s2, 5')
        a(f's_lshl_b32 s{sC}, s{sT}, 1'); a(f's_add_u32 s{sC}, s{sC}, s{sB}')
    else:
        a(f's_and_b32 s{sB}, s2, 1'); a(f's_lshl_b32 s{sB}, s{sB}, 2'); a(f's_and_b32 s{sT}, s{sT}, 3'); a(f's_add_u32 s{sB}, s{sB}, s{sT}')
        a(f's_and_b32 s{sH}, s2, 6'); a(f's_lshl_b32 s{sH}, s{sH}, 2'); a(f's_lshr_b32 s{sT2}, s2, 5'); a(f's_add_u32 s{sH}, s{sH}, s{sT2}')
        a(f's_lshl_b32 s{sC}, s{sT}, 1'); a(f's_add_u32 s{sC}, s{sC}, s{sT2}')
    a(f's_cmp_ge_u32 s{sC}, 9'); a(f's_cselect_b32 s{sT2}, 9, 0'); a(f's_sub_u32 s{sC}, s{sC}, s{sT2}')
    a(f's_and_b32 s{sHH}, s{sW}, 1')
    a(f's_mov_b32 s{sN}, 0')
    a(f's_cmp_ge_u32 s{sW}, 4'); a('s_cbranch_scc1 L_compute')
    a(f's_cmp_ge_u32 s{sW}, 2'); a('s_cbranch_scc1 L_hkv')
    helper_xw(a, cfg)
    a.label('L_hkv')
    helper_kv(a, cfg)
    helper_p2(a, cfg)
    a.label('L_compute')
    compute(a, cfg)
    a.label('L_endA')
    a('s_endpgm')
    return a.text()

def build(cfg):
    ka = kernel_a(cfg)
    hazard.check(ka)
    return build_file([dict(name='standalone__mha_block_cached__near_ridge_kernel', body=ka, grid=256, block=512, lds=163840, vgpr=256, single=True)])

if __name__ == '__main__':
    cfg = Cfg()
    out = sys.argv[1]
    for kv in sys.argv[2:]:
        k, v = kv.split('=', 1)
        setattr(cfg, k, eval(v))
    open(out, 'w').write(build(cfg))
```

```python
import sys, math, struct
from asmlib import *
import hazard
import gen as g1

def f32bits(x): return struct.unpack('<I', struct.pack('<f', x))[0]
U = 16384
SCALE = 128 ** -0.5 * math.log2(math.e)
THR = 2.0 ** 24
STAMP_OFF = 200 << 20
def vr(b, n=4): return f'v[{b}:{b+n-1}]'
MF = 'v_mfma_f32_16x16x32_bf16'

def O_(qt, v): return (qt*8 + v)*4
def QA(qt, u, T): return 96 + (u*3+qt)*8 + 4*T
def Q_(qt, u): return QA(qt, u, 0)
def S_(qt, T): return QA(qt, T, 1)
def P_(pb, qt): return QA(qt, 2+pb, 1)
RING = 192
def R_(f): return RING + 4*(f % 8)
def XF(par, qt): return 224 + 12*par + 4*qt
AK = 224
def L_(qt): return 228 + qt
TMP = 231
def MN(qt): return 236 + 4*qt
AW = 248; AV = 248
AX = 92; AKB = 94; AVB = 95
XSLOT = 24576; WBASE = 73728
KUNIT = [8, 0, 1, 3, 8, 0, 1, 3]
VUNIT = [9, 5, 2, 4, 9, 5, 2, 4]
FLAG_LDS = 3*U
FLAG_OFF = 16 << 20
PFLAG_OFF = 17 << 20
PW_OFF = 20 << 20
def ACC(qt, j): return 180 + (j*3 + qt)*4
def WROW(r):
    if r == 8: return ACC(2, 5)
    if r < 8: return ACC(r >> 2, (r & 3) + 1)
    return (r - 9)*4
OPOOL = list(range(144, 180, 4))
VL16, VLD = 252, 253
VNON = 144; VPL = 146; VKQ = 148; VVQ = 150; VHT = 152
UORD = [6, 7, 8, 9, 0, 5, 1, 2, 3, 4]
SWO, SOUT, SDBG = 20, 32, 32
sR, sCS, sWB, sWD, sO = 74, 75, 76, 77, 78
sRT = 67; sOE = 81
S2 = 82
STV = 160
SX, SK, SV, SWQ, SWS = 20, 24, 28, 32, 36
sW, sB, sH, sC, sT, sT2, sHH = 40, 41, 42, 43, 44, 45, 46
sI, sN, sWL, sXL, sDW, sDX, sKX, sVX, sKS, sVS = 47, 48, 49, 50, 51, 52, 53, 54, 55, 56
sTHR, sSCALE, sOB, sREDO, sMASK, sTMASK, sJ, sG = 57, 58, 59, 62, 63, 64, 65, 66
sODD = 68
sMT = 70

class Cfg:
    stamps = False
    mapping = 1
    kv_nt = True
    LA = 5
    prio = 3
    oprio = 0
    hprio = 0
    cmap = 1
    inv = False
    rotr = 0; rotc = 0; rotm = 0; swap = 0
    touch = 0
    rot1 = 1
    fine = 0; cap = 99; dbgR = 0; nst = 9; obar = (); tlbo = 0; dbgO = 0; dyn = 0
    ost = ' sc1'; fst = ' sc1'; old = ' sc1'
    nraw1 = 20
    ksched = {1: ['pl'], 2: ['non'], 3: ['ps'], 5: ['pw'], 6: ['pf', 'kv0'], 8: ['kv1'], 9: ['kv2']}
    sched = {9: ['chk'], 10: ['kv3'], 11: ['kv4'], 12: ['kv5', 'w0-5'], 13: ['kv6', 'w5-10'], 14: ['kv7', 'w10-18', 'u0'], 15: ['w18-27', 'u1', 'u2'],
             16: ['w27-36', 'u3', 'u4'], 17: ['w36-45', 'u5'], 18: ['u6', 'u7'], 19: ['u8', 'u9']}

def pack4(l):
    v = 0
    for i, x in enumerate(l): v |= x << (4*i)
    return v

def st2(a, cfg, i, fine=False):
    if cfg.fine and not fine:
        if i == 5: i = 0
        elif i == 7: i = 9
        else: return
    elif fine and not cfg.fine: return
    if cfg.stamps: a(f's_memtime s[{S2+2*i}:{S2+2*i+1}]')

def hstamp(a, cfg, lane_expr, vreg=STV):
    if not cfg.stamps: return
    a(f's_memtime s[{sMT}:{sMT+1}]')
    if isinstance(lane_expr, str): a(f's_mov_b32 m0, {lane_expr}'); lane_expr = 'm0'
    a('s_waitcnt lgkmcnt(0)')
    a(f'v_writelane_b32 v{vreg}, s{sMT}, {lane_expr}')

def hstamp_store(a, cfg, vreg=STV):
    if not cfg.stamps: return
    a(f's_memrealtime s[{sMT}:{sMT+1}]'); a('s_waitcnt lgkmcnt(0)')
    a(f'v_writelane_b32 v{vreg}, s{sMT}, 63')
    a(f'v_mbcnt_lo_u32_b32 v161, -1, 0'); a(f'v_mbcnt_hi_u32_b32 v161, -1, v161'); a('v_lshlrev_b32 v161, 2, v161')
    a(f's_lshl_b32 s{sT}, s2, 10'); a(f's_lshl_b32 s{sT2}, s{sW}, 8'); a(f's_add_u32 s{sT}, s{sT}, s{sT2}'); a(f's_add_u32 s{sT}, s{sT}, {STAMP_OFF}')
    srd(a, SWS, 18, 268435456)
    a(f'buffer_store_dword v{vreg}, v161, s[{SWS}:{SWS+3}], s{sT} offen')

def redo_check(a, vtmp, lbl_redo):
    a(f'v_mov_b32 v{vtmp}, {FLAG_LDS}')
    a(f'ds_read_b128 {vr(vtmp+1 if False else vtmp)}, v{vtmp}')
    a('s_waitcnt lgkmcnt(0)')
    a(f'v_or3_b32 v{vtmp}, v{vtmp}, v{vtmp+1}, v{vtmp+2}')
    a(f'v_or_b32 v{vtmp}, v{vtmp}, v{vtmp+3}')
    a('s_nop 0')
    a(f'v_readfirstlane_b32 s{sT}, v{vtmp}')
    a('s_nop 0')
    a(f's_cmp_lg_u32 s{sT}, 0')
    a(f's_cbranch_scc1 {lbl_redo}')

def helper_xw(a, cfg):
    lane = 1; t0, t1, t2, t3 = 2, 3, 4, 5
    VX, VW = 8, 12
    a(f'v_lshrrev_b32 v{t0}, 3, v{lane}')
    a(f's_mul_i32 s{sT}, s{sHH}, 96')
    a(f'v_add_u32 v{t0}, s{sT}, v{t0}')
    a(f'v_mul_u32_u24 v{t0}, 1152, v{t0}')
    a(f'v_lshrrev_b32 v{t2}, 4, v{lane}')
    a(f'v_and_b32 v{t1}, 7, v{lane}')
    a(f'v_xor_b32 v{t1}, v{t1}, v{t2}')
    a(f'v_lshl_add_u32 v{VX}, v{t1}, 4, v{t0}')
    a(f'v_xor_b32 v{t1}, 4, v{t1}')
    a(f'v_lshl_add_u32 v{VX+1}, v{t1}, 4, v{t0}')
    a(f'v_add_u32 v{VX+1}, 8192, v{VX+1}')
    a(f'v_add_u32 v{VX+2}, 16384, v{VX}')
    a(f'v_add_u32 v{VX+3}, 16384, v{VX+1}')
    a(f's_lshl_b32 s{sT}, s{sHH}, 4')
    a(f'v_add_u32 v{t0}, s{sT}, v{t2}')
    a(f'v_lshlrev_b32 v{t0}, 13, v{t0}')
    a(f'v_and_b32 v{t1}, 1, v{t2}')
    a(f'v_lshrrev_b32 v{t3}, 5, v{lane}')
    a(f'v_lshl_or_b32 v{t1}, v{t3}, 2, v{t1}')
    a(f'v_and_b32 v{t3}, 15, v{lane}')
    a(f'v_xor_b32 v{t1}, v{t1}, v{t3}')
    a(f'v_lshl_add_u32 v{VW}, v{t1}, 4, v{t0}')
    a(f'v_add_u32 v{VW+1}, 31744, v{VW}')
    a(f'v_xor_b32 v{VW+2}, 128, v{VW}')
    a(f'v_add_u32 v{VW+2}, 63488, v{VW+2}')
    a(f'v_add_u32 v{VW+3}, 31744, v{VW+2}')
    a(f's_lshl_b32 s{sT}, s{sHH}, 12')
    a(f's_add_u32 s{sWL}, s{sT}, {WBASE + 4*8192}')
    a(f's_add_u32 s{sDW}, s{sT}, {WBASE + 7*8192}')
    a(f's_mul_i32 s{sXL}, s{sHH}, 12288')
    a(f's_add_u32 s{sDX}, s{sXL}, {3*XSLOT}')
    a(f's_mov_b32 s{sI}, 0')
    a(f's_mul_i32 s{sT}, s{sB}, 221184')
    a(f's_lshl_b32 s{sT2}, s{sH}, 8')
    a('s_waitcnt lgkmcnt(0)')
    a(f's_add_u32 s{SX}, s4, s{sT}'); a(f's_addc_u32 s{SX+1}, s5, 0'); a(f's_mov_b32 s{SX+2}, 221184'); a(f's_mov_b32 s{SX+3}, 0x00020000')
    a(f's_add_u32 s{SWQ}, s10, s{sT2}'); a(f's_addc_u32 s{SWQ+1}, s11, 0'); a(f's_sub_u32 s{SWQ+2}, {576*8192}, s{sT2}'); a(f's_mov_b32 s{SWQ+3}, 0x00020000')
    hstamp(a, cfg, 1)
    a.label('L_xw')
    def wl(extra):
        a(f's_mov_b32 m0, s{sWL}')
        a(f's_lshl_b32 s{sT}, s{sC}, 19')
        if extra: a(f's_add_u32 s{sT}, s{sT}, {extra}')
        for p in range(4): a(f'buffer_load_dwordx4 v{VW+p}, s[{SWQ}:{SWQ+3}], s{sT} offen offset:{p*1024} lds')
        a(f's_add_u32 s{sWL}, s{sWL}, 8192'); a(f's_cmp_eq_u32 s{sWL}, s{sDW}'); a(f's_cselect_b32 s{sT}, {7*8192}, 0'); a(f's_sub_u32 s{sWL}, s{sWL}, s{sT}')
    wl(0)
    a(f's_lshl_b32 s{sT2}, s{sC}, 7')
    for g in range(3):
        a(f's_add_u32 m0, s{sXL}, {g*4096}')
        if g: a(f's_add_u32 s{sT2}, s{sT2}, 36864')
        else: a('s_nop 0')
        for p in range(4): a(f'buffer_load_dwordx4 v{VX+p}, s[{SX}:{SX+3}], s{sT2} offen offset:{p*1024} lds')
    wl(262144)
    a(f's_add_u32 s{sXL}, s{sXL}, {XSLOT}'); a(f's_cmp_eq_u32 s{sXL}, s{sDX}'); a(f's_cselect_b32 s{sT}, {3*XSLOT}, 0'); a(f's_sub_u32 s{sXL}, s{sXL}, s{sT}')
    a(f's_add_u32 s{sC}, s{sC}, 1'); a(f's_cmp_eq_u32 s{sC}, 9'); a(f's_cselect_b32 s{sC}, 0, s{sC}')
    a(f's_add_u32 s{sI}, s{sI}, 1'); a(f's_cmp_eq_u32 s{sI}, 1'); a('s_cbranch_scc1 L_xw')
    if cfg.stamps:
        a(f's_add_u32 s{sT}, s{sI}, 40'); hstamp(a, cfg, f's{sT}')
    a('s_waitcnt vmcnt(20)')
    if cfg.stamps:
        a(f's_add_u32 s{sT}, s{sI}, 20'); hstamp(a, cfg, f's{sT}')
    a('s_barrier')
    hstamp(a, cfg, f's{sI}')
    a(f's_cmp_lt_u32 s{sI}, 9'); a('s_cbranch_scc1 L_xw')
    a('s_waitcnt vmcnt(0)')
    hstamp(a, cfg, 30)
    a('s_barrier')
    hstamp(a, cfg, 10)
    a('s_branch L_h9')

def nonce_wait(a, vn, vz, lbl):
    a(f's_mov_b32 s{sI}, 0')
    a.label(lbl)
    a(f'v_cmp_eq_u32 vcc, 0, v{vn}')
    a(f's_cbranch_vccz {lbl}_d')
    a('s_sleep 2')
    a(f'buffer_load_dwordx2 v[{vn}:{vn+1}], v{vz}, s[{SDBG}:{SDBG+3}], 0 offen sc1')
    a(f's_add_u32 s{sI}, s{sI}, 1')
    a('s_waitcnt vmcnt(0)')
    a(f's_cmp_lt_u32 s{sI}, 0x100000'); a(f's_cbranch_scc1 {lbl}')
    a.label(lbl + '_d')

def helper_kv(a, cfg):
    lane = 1; t0, t1, t2, t3 = 2, 3, 4, 5
    VK, VV, VD, VZ, VT, VTH, VL, VP, VF = 8, 12, 16, 18, 19, 20, 21, 22, 32
    nt = ' nt' if cfg.kv_nt else ''
    a(f'v_lshrrev_b32 v{t2}, 4, v{lane}')
    a(f'v_and_b32 v{t3}, 15, v{lane}')
    a(f's_lshl_b32 s{sXL}, s{sHH}, 13')
    a(f'v_lshl_add_u32 v{t1}, v{t2}, 8, s{sXL}')
    a(f'v_xor_b32 v{t0}, v{t2}, v{t3}')
    a(f'v_lshl_add_u32 v{VK}, v{t0}, 4, v{t1}')
    for j in range(1, 4): a(f'v_xor_b32 v{VK+j}, {(j << 6) | ((j >> 1) << 12)}, v{VK}')
    a(f'v_lshlrev_b32 v{t0}, 1, v{t2}')
    a(f'v_xor_b32 v{t0}, v{t0}, v{t3}')
    a(f'v_lshl_add_u32 v{VV}, v{t0}, 4, v{t1}')
    for j in range(1, 4): a(f'v_xor_b32 v{VV+j}, {((j & 1) << 7) | ((j >> 1) << 12)}, v{VV}')
    a(f'v_mov_b32 v{VZ}, 0')
    a(f's_lshl_b32 s{sT}, s{sB}, 5'); a(f's_add_u32 s{sT}, s{sT}, s{sH}'); a(f's_lshl_b32 s{sT}, s{sT}, 17')
    a('s_waitcnt lgkmcnt(0)')
    a(f's_add_u32 s{SK}, s6, s{sT}'); a(f's_addc_u32 s{SK+1}, s7, 0'); a(f's_mov_b32 s{SK+2}, 131072'); a(f's_mov_b32 s{SK+3}, 0x00020000')
    a(f's_add_u32 s{SV}, s8, s{sT}'); a(f's_addc_u32 s{SV+1}, s9, 0'); a(f's_mov_b32 s{SV+2}, 131072'); a(f's_mov_b32 s{SV+3}, 0x00020000')
    srd(a, SDBG, 16, 256)
    if cfg.touch:
        a(f'v_lshlrev_b32 v{t0}, 12, v{lane}')
        a(f's_cmp_eq_u32 s{sHH}, 0'); a(f's_cselect_b32 s{SK+2}, 131072, 0'); a(f's_cselect_b32 s{SV+2}, 0, 131072')
        a(f'buffer_load_dword v40, v{t0}, s[{SK}:{SK+3}], 0 offen sc1')
        a(f'buffer_load_dword v41, v{t0}, s[{SV}:{SV+3}], 0 offen sc1')
        a(f's_mov_b32 s{SK+2}, 131072'); a(f's_mov_b32 s{SV+2}, 131072')
    hstamp(a, cfg, 61)
    a(f's_or_b32 s{sT}, s2, s{sHH}'); a(f's_cmp_lg_u32 s{sT}, 0'); a('s_cbranch_scc1 L_kv0')
    a(f's_memrealtime s[{sKX+1}:{sKX+2}]')
    a('s_waitcnt lgkmcnt(0)')
    a(f's_or_b32 s{sKX+1}, s{sKX+1}, 1')
    a(f'v_mov_b32 v{VD}, s{sKX+1}'); a(f'v_mov_b32 v{VD+1}, s{sKX+2}')
    a('s_mov_b64 exec, 1')
    a(f'buffer_store_dwordx2 v[{VD}:{VD+1}], v{VZ}, s[{SDBG}:{SDBG+3}], 0 offen sc1')
    a('s_mov_b64 exec, -1')
    a.label('L_kv0')
    srd(a, SWO, 12, 4096*1152)
    srd(a, SWS, 18, 268435456)
    a(f'v_lshlrev_b32 v{VL}, 4, v{lane}')
    a(f's_movk_i32 s{sT}, 7282'); a(f's_movk_i32 s{sT2}, 1008')
    a(f'v_mul_u32_u24 v{t1}, s{sT}, v{lane}')
    for p in range(9):
        if p: a(f'v_add_u32 v{t0}, {64*7282*p}, v{t1}')
        a(f'v_lshrrev_b32 v{t0}, 16, v{t0 if p else t1}')
        a(f'v_mad_u32_u24 v{VP+p}, v{t0}, s{sT2}, v{VL}')
    a(f's_lshl_b32 s{sWD}, s{sHH}, 14'); a(f's_add_u32 s{sWD}, s{sWD}, {8*U}')
    a(f'v_lshrrev_b32 v{t0}, 2, v{lane}'); a(f'v_mul_u32_u24 v{t0}, 144, v{t0}'); a(f'v_and_b32 v{t1}, 3, v{lane}')
    a(f'v_lshl_add_u32 v{t0}, v{t1}, 3, v{t0}'); a(f'v_add_u32 v{VT}, s{sWD}, v{t0}')
    a(f'v_bfe_u32 v{t1}, v{lane}, 1, 1'); a(f'v_mul_u32_u24 v{t1}, {32*144 - 16}, v{t1}'); a(f'v_add_u32 v{VTH}, v{VT}, v{t1}')
    a(f's_and_b32 s{sCS}, s2, 3'); a(f's_lshl_b32 s{sCS}, s{sCS}, 1'); a(f's_add_u32 s{sCS}, s{sCS}, s{sHH}')
    a(f's_lshr_b32 s{sR}, s2, 2')
    a(f's_mul_i32 s{sO}, s{sR}, {64*1152}'); a(f's_mul_i32 s{sT}, s{sCS}, 144'); a(f's_add_u32 s{sO}, s{sO}, s{sT}')
    a(f's_mul_i32 s{sWB}, s{sCS}, 589824'); a(f's_lshr_b32 s{sT}, s{sR}, 3'); a(f's_mul_i32 s{sT}, s{sT}, {9*8192}'); a(f's_add_u32 s{sWB}, s{sWB}, s{sT}')
    a(f's_and_b32 s{sT}, s{sR}, 7'); a(f's_lshl_b32 s{sT}, s{sT}, 10'); a(f's_add_u32 s{sWB}, s{sWB}, s{sT}'); a(f's_add_u32 s{sWB}, s{sWB}, {PW_OFF}')
    if cfg.touch:
        a('s_mov_b64 exec, 3')
        a(f'v_mul_u32_u24 v{t0}, 65536, v{lane}' if False else f'v_lshlrev_b32 v{t0}, 16, v{lane}')
        a(f'buffer_load_dword v42, v{t0}, s[{SWO}:{SWO+3}], s{sO} offen sc1')
        a(f'buffer_load_dword v43, v{t0}, s[{SWS}:{SWS+3}], s{sWB} offen sc1')
        a('s_mov_b64 exec, -1')
    def item(it):
        if it == 'pl':
            for p in range(9):
                if p % 4 == 0:
                    a(f's_add_u32 m0, s{sWD}, {p*1024}'); a(f's_add_u32 s{sT}, s{sO}, {p*1024}')
                a(f'buffer_load_dwordx4 v{VP+p}, s[{SWO}:{SWO+3}], s{sT} offen offset:{(p & 3)*1024} lds')
        elif it == 'non':
            a(f'buffer_load_dwordx2 v[{VD}:{VD+1}], v{VZ}, s[{SDBG}:{SDBG+3}], 0 offen sc1')
        elif it == 'ps':
            a('s_waitcnt vmcnt(0)')
            for f in range(9):
                for hf in range(2):
                    d = VF + 4*f + 2*hf
                    if f < 8: a(f'ds_read_b64_tr_b16 v[{d}:{d+1}], v{VT} offset:{(f >> 2)*32*144 + hf*16*144 + (f & 3)*32}')
                    else: a(f'ds_read_b64_tr_b16 v[{d}:{d+1}], v{VTH} offset:{hf*16*144 + 128}')
            for f in range(9):
                a(f's_add_u32 s{sT}, s{sWB}, {f*8192}')
                a(f's_waitcnt lgkmcnt({min(15, 16 - 2*f)})')
                a(f'buffer_store_dwordx4 {vr(VF + 4*f)}, v{VL}, s[{SWS}:{SWS+3}], s{sT} offen sc1')
        elif it == 'pw':
            a('s_waitcnt vmcnt(0)')
            nonce_wait(a, VD, VZ, 'L_kv_non')
        elif it == 'pf':
            a(f's_cmp_lg_u32 s{sHH}, 0'); a('s_cbranch_scc1 L_kv_nf')
            a(f's_and_b32 s{sT}, s2, 3'); a(f's_lshl_b32 s{sT}, s{sT}, 6'); a(f's_add_u32 s{sT}, s{sT}, s{sR}'); a(f's_lshl_b32 s{sT}, s{sT}, 3'); a(f's_add_u32 s{sT}, s{sT}, {PFLAG_OFF}')
            a('s_mov_b64 exec, 1')
            a(f'buffer_store_dwordx2 v[{VD}:{VD+1}], v{VZ}, s[{SWS}:{SWS+3}], s{sT} offen sc1')
            a('s_mov_b64 exec, -1')
            a.label('L_kv_nf')
        elif it.startswith('kv'):
            j = int(it[2:])
            a(f's_mov_b32 s{sT}, {j*16384}')
            for (unit, srdn, vb) in ((KUNIT[j], SK, VK), (VUNIT[j], SV, VV)):
                for p in range(8):
                    if p % 4 == 0: a(f's_add_u32 m0, s{sXL}, {unit*U + p*1024}'); a('s_nop 0')
                    a(f'buffer_load_dwordx4 v{vb + (p >> 1)}, s[{srdn}:{srdn+3}], s{sT} offen offset:{(p & 3)*1024}{nt} lds')
    for k in range(10):
        for it in cfg.ksched.get(k, []): item(it)
        hstamp(a, cfg, 40 + k)
        if k < 9:
            a('s_barrier')
            hstamp(a, cfg, k)
    a('s_waitcnt vmcnt(40)')
    hstamp(a, cfg, 29)

def op_consts(a, t0):
    a(f'v_mbcnt_lo_u32_b32 v{t0}, -1, 0'); a(f'v_mbcnt_hi_u32_b32 v{t0}, -1, v{t0}')
    a(f'v_lshlrev_b32 v{VL16}, 4, v{t0}')
def op_consts2(a):
    a(f's_lshl_b32 s{sT}, s{sG}, 10')
    a(f'v_add_u32 v{VLD}, s{sT}, v{VL16}')
    a(f'v_add_u32 v{VLD+1}, 65536, v{VLD}')
    a(f'v_add_u32 v{VLD+2}, 131072, v{VLD}')

def op_scalars(a, cfg):
    if cfg.cmap == 0:
        a(f's_and_b32 s{sR}, s2, 7'); a(f's_lshl_b32 s{sR}, s{sR}, 2'); a(f's_bfe_u32 s{sT}, s2, 0x20003'); a(f's_add_u32 s{sR}, s{sR}, s{sT}')
        a(f's_lshr_b32 s{sCS}, s2, 5')
    else:
        a(f's_and_b32 s{sR}, s2, 6'); a(f's_lshl_b32 s{sR}, s{sR}, 2'); a(f's_bfe_u32 s{sT}, s2, 0x30003'); a(f's_add_u32 s{sR}, s{sR}, s{sT}')
        a(f's_lshr_b32 s{sCS}, s2, 6'); a(f's_and_b32 s{sT}, s2, 1'); a(f's_lshl_b32 s{sT}, s{sT}, 2'); a(f's_add_u32 s{sCS}, s{sCS}, s{sT}')
    a(f's_and_b32 s{sT}, s{sR}, 3'); a(f's_mul_i32 s{sT}, s{sT}, {cfg.rotr}'); a(f's_mul_i32 s{sRT}, s{sCS}, {cfg.rotc}'); a(f's_add_u32 s{sRT}, s{sRT}, s{sT}'); a(f's_and_b32 s{sRT}, s{sRT}, {cfg.rotm}')
    a(f's_and_b32 s{sT2}, s{sR}, {cfg.swap}'); a(f's_lshl_b32 s{sT2}, s{sT2}, 2'); a(f's_xor_b32 s{sG}, s{sT2}, s{sW}')
    a(f's_mul_i32 s{sWD}, s{sCS}, 589824'); a(f's_add_u32 s{sWD}, s{sWD}, {PW_OFF}')
    a(f's_mul_i32 s{sT}, s{sRT}, 73728'); a(f's_add_u32 s{sWD}, s{sWD}, s{sT}')
    a(f's_lshl_b32 s{sT}, s{sG}, 10'); a(f's_add_u32 s{sWB}, s{sWD}, s{sT}')
    a(f's_lshl_b32 s{sT}, s{sW}, 11'); a(f's_add_u32 s{sWD}, s{sWD}, s{sT}')
    a(f's_mul_i32 s{sO}, s{sR}, {0 if cfg.dbgR else 3*131072}'); a(f's_lshl_b32 s{sT}, s{sG}, 11'); a(f's_add_u32 s{sO}, s{sO}, s{sT}')
    a(f's_lshl_b32 s{sT}, s{sRT}, 14'); a(f's_add_u32 s{sO}, s{sO}, s{sT}')
    if cfg.dbgO: a(f's_add_u32 s{sO}, s{sO}, {cfg.dbgO}')
    a(f's_add_u32 s{sO+1}, s{sO}, 131072'); a(f's_add_u32 s{sO+2}, s{sO}, 262144')

class Wrap:
    cur = None
def wrapc(a, s, force=False):
    if Wrap.cur != s or force:
        a(f's_cmp_ge_u32 s{sRT}, {8 - s}'); a(f's_cselect_b32 s{sOE}, {(s - 8)*73728 & 0xffffffff:#x}, {s*73728}' if s == 0 else f's_cselect_b32 s{sOE}, 589824, 0')
        if s: a(f's_sub_u32 s{sOE}, {s*73728}, s{sOE}')
        Wrap.cur = s
def w_load(a, vm, r, d=None):
    wrapc(a, r // 9)
    a(f's_add_u32 s{sT}, s{sWB}, s{sOE}')
    if r % 9: a(f's_add_u32 s{sT}, s{sT}, {(r % 9)*8192}')
    a(f'buffer_load_dwordx4 {vr(WROW(r) if d is None else d)}, v{VL16}, s[{SWS}:{SWS+3}], s{sT} offen sc1')
    vm.issue(('w', r))
def vmwait(a, vm, pred):
    n = vm.need(pred)
    assert n is not None
    if n < vm.done:
        a(f's_waitcnt vmcnt({min(n, 63)})'); vm.done = min(n, 63)
class VM2(g1.VM):
    def __init__(s): super().__init__(); s.done = 10**6
    def issue(s, tag): super().issue(tag); s.done += 1

def helper_p2(a, cfg):
    nt = ' nt' if cfg.kv_nt else ''
    vm = VM2()
    for j in range(3):
        for k in 'KV':
            for _ in range(8): vm.issue((k, j))
    def kvq(j):
        a(f's_mov_b32 s{sT}, {j*16384}')
        for (k, unit, srdn, vb) in (('K', KUNIT[j], SK, VKQ), ('V', VUNIT[j], SV, VVQ)):
            a(f's_add_u32 m0, s{sXL}, {unit*U}'); a('s_nop 0')
            for p in range(4):
                a(f'buffer_load_dwordx4 v{vb + (p >> 1)}, s[{srdn}:{srdn+3}], s{sT} offen offset:{p*1024}{nt} lds')
                vm.issue((k, j))
    def item(it):
        if it == 'chk':
            a(f's_cmp_ge_u32 s{sW}, 2'); a('s_cbranch_scc1 L_h_nochk')
            a(f'v_mov_b32 v{VHT}, 0')
            a(f'buffer_load_dwordx2 v[{VNON}:{VNON+1}], v{VHT}, s[{SDBG}:{SDBG+3}], 0 offen sc1')
            a(f'v_lshrrev_b32 v{VHT+1}, 1, v{VL16}')
            a(f's_lshr_b32 s{sT}, s{sCS}, 1'); a(f's_lshl_b32 s{sT}, s{sT}, 9'); a(f's_add_u32 s{sT}, s{sT}, {PFLAG_OFF}')
            a(f'buffer_load_dwordx2 v[{VHT+2}:{VHT+3}], v{VHT+1}, s[{SWS}:{SWS+3}], s{sT} offen sc1')
            a('s_waitcnt vmcnt(0)')
            nonce_wait(a, VNON, VHT, 'L_h_non')
            a(f's_mov_b32 s{sI}, 0')
            a.label('L_h_chk')
            a(f'v_cmp_ne_u64 vcc, v[{VHT+2}:{VHT+3}], v[{VNON}:{VNON+1}]')
            a('s_cbranch_vccz L_h_chkd')
            a('s_sleep 2')
            a(f'buffer_load_dwordx2 v[{VHT+2}:{VHT+3}], v{VHT+1}, s[{SWS}:{SWS+3}], s{sT} offen sc1')
            a(f's_add_u32 s{sI}, s{sI}, 1')
            a('s_waitcnt vmcnt(0)')
            a(f's_cmp_lt_u32 s{sI}, 0x100000'); a('s_cbranch_scc1 L_h_chk')
            a.label('L_h_chkd')
            if cfg.inv:
                a(f's_cmp_lg_u32 s{sW}, 0'); a('s_cbranch_scc1 L_h_nochk')
                a('buffer_inv sc1')
            a.label('L_h_nochk')
        elif it == 'tlb':
            a(f'v_lshlrev_b32 v{VHT+4}, 8, v{VL16}')
            a(f's_mul_i32 s{sT}, s{sR}, {3*131072}'); a(f's_lshl_b32 s{sT2}, s{sHH}, 18'); a(f's_add_u32 s{sT}, s{sT}, s{sT2}')
            a(f'buffer_load_dword v{VHT+5}, v{VHT+4}, s[{SWS}:{SWS+3}], s{sT} offen offset:{cfg.tlbo} sc1')
        elif it.startswith('kv'): kvq(int(it[2:]))
        elif it[0] == 'w':
            r0, r1 = map(int, it[1:].split('-'))
            for r in range(r0, r1): w_load(a, vm, r)
        elif it[0] == 'u':
            i = int(it[1:])
            for hr in range(2):
                r = 45 + 2*i + hr
                wrapc(a, r // 9)
                a(f's_lshr_b32 s{sT}, s{sXL}, 1'); a(f's_add_u32 m0, s{sT}, {UORD[i]*U + hr*8192}')
                a(f's_add_u32 s{sT}, s{sWD}, s{sOE}')
                if r % 9: a(f's_add_u32 s{sT}, s{sT}, {(r % 9)*8192}')
                for p in range(2):
                    a(f'buffer_load_dwordx4 v{VL16}, s[{SWS}:{SWS+3}], s{sT} offen offset:{p*1024} sc1 lds')
                    vm.issue(('u', i))
    Wrap.cur = None
    a.label('L_h9')
    a('s_barrier')
    hstamp(a, cfg, 9)
    t0, t1, t2, t3 = VHT, VHT+1, VHT+2, VHT+3
    op_scalars(a, cfg)
    op_consts(a, t0)
    op_consts2(a)
    a(f's_lshl_b32 s{sXL}, s{sW}, 12')
    a(f'v_lshrrev_b32 v{t2}, 4, v{t0}')
    a(f'v_and_b32 v{t3}, 15, v{t0}')
    a(f'v_lshl_add_u32 v{t1}, v{t2}, 8, s{sXL}')
    a(f'v_xor_b32 v{VKQ}, v{t2}, v{t3}')
    a(f'v_lshl_add_u32 v{VKQ}, v{VKQ}, 4, v{t1}')
    a(f's_lshl_b32 s{sT}, s{sHH}, 7')
    a(f'v_xor_b32 v{VKQ}, s{sT}, v{VKQ}')
    a(f'v_xor_b32 v{VKQ+1}, 64, v{VKQ}')
    a(f'v_lshlrev_b32 v{VVQ}, 1, v{t2}')
    a(f'v_xor_b32 v{VVQ}, v{VVQ}, v{t3}')
    a(f'v_lshl_add_u32 v{VVQ}, v{VVQ}, 4, v{t1}')
    a(f'v_xor_b32 v{VVQ+1}, 128, v{VVQ}')
    a(f'v_and_b32 v{VPL}, 31, v{t0}'); a(f'v_lshlrev_b32 v{VPL}, 8, v{VPL}')
    a(f's_lshl_b32 s{sT}, s{sB}, 5'); a(f's_add_u32 s{sT}, s{sT}, s{sH}'); a(f's_lshl_b32 s{sT}, s{sT}, 17')
    a(f's_add_u32 s{SK}, s6, s{sT}'); a(f's_addc_u32 s{SK+1}, s7, 0'); a(f's_mov_b32 s{SK+2}, 131072'); a(f's_mov_b32 s{SK+3}, 0x00020000')
    a(f's_add_u32 s{SV}, s8, s{sT}'); a(f's_addc_u32 s{SV+1}, s9, 0'); a(f's_mov_b32 s{SV+2}, 131072'); a(f's_mov_b32 s{SV+3}, 0x00020000')
    srd(a, SDBG, 16, 256)
    srd(a, SWS, 18, 268435456)
    a(f'v_mov_b32 v{VNON}, 0'); a(f'v_mov_b32 v{VNON+1}, 0')
    for k in range(9, 18):
        for it in cfg.sched.get(k, []): item(it)
        hstamp(a, cfg, 40 + k + 1)
        i = k - 9
        if i < 8: vmwait(a, vm, lambda t: t == ('V', i) or t == ('K', i+1))
        hstamp(a, cfg, 20 + k + 1)
        a('s_barrier')
        hstamp(a, cfg, k + 1)
    redo_check(a, VHT, 'L_h_redo')
    for it in cfg.sched.get(18, []): item(it)
    hstamp(a, cfg, 39)
    st2(a, cfg, 2)
    a('s_barrier')
    st2(a, cfg, 3)
    a(f's_cmp_lg_u32 s{sW}, 0'); a('s_cbranch_scc1 L_h_nosig')
    a(f's_lshl_b32 s{sT}, s{sB}, 5'); a(f's_add_u32 s{sT}, s{sT}, s{sH}'); a(f's_lshl_b32 s{sT}, s{sT}, 8'); a(f's_add_u32 s{sT}, s{sT}, {FLAG_OFF}')
    a('s_mov_b64 exec, 1')
    a(f'buffer_store_dwordx2 v[{VNON}:{VNON+1}], v{VPL}, s[{SWS}:{SWS+3}], s{sT} offen{cfg.fst}')
    a('s_mov_b64 exec, -1')
    a.label('L_h_nosig')
    hstamp(a, cfg, 19)
    hstamp_store(a, cfg)
    for it in cfg.sched.get(19, []): item(it)
    a(f's_setprio {cfg.hprio}')
    a(f's_cmp_lg_u32 s{sW}, 1'); a('s_cbranch_scc1 L_h_np')
    a(f's_lshr_b32 s{sT}, s{sR}, 2'); a(f's_lshl_b32 s{sT}, s{sT}, 13'); a(f's_add_u32 s{sT}, s{sT}, {FLAG_OFF}')
    a(f's_mov_b32 s{sI}, 0')
    a.label('L_h_poll')
    a(f'buffer_load_dwordx2 v[{VHT}:{VHT+1}], v{VPL}, s[{SWS}:{SWS+3}], s{sT} offen sc1')
    a(f's_add_u32 s{sI}, s{sI}, 1')
    a('s_waitcnt vmcnt(0)')
    a(f'v_cmp_ne_u64 vcc, v[{VHT}:{VHT+1}], v[{VNON}:{VNON+1}]')
    a('s_cbranch_vccz L_op')
    a('s_sleep 1')
    a(f's_cmp_lt_u32 s{sI}, 0x100000'); a('s_cbranch_scc1 L_h_poll')
    a.label('L_h_np')
    a('s_waitcnt vmcnt(0)')
    a('s_branch L_op')
    a.label('L_h_redo')
    a('s_waitcnt vmcnt(0)')
    a('s_barrier')
    for j in range(3): kvq(j)
    a('s_waitcnt vmcnt(0)')
    a('s_branch L_h9')

def oproj(a, cfg):
    a.label('L_op')
    srd(a, SOUT, 14, 1536*1152)
    a(f's_mov_b32 s{sN}, 16384')
    Wrap.cur = None
    st2(a, cfg, 4)
    a('s_barrier')
    st2(a, cfg, 5)
    vm = VM2(); st = Stream(a)
    pool = list(OPOOL); dest = {}; nx = [0]; cur = [0]
    home = {r: WROW(r) for r in range(45)}
    first = {0: ACC(0, 5), 1: ACC(1, 5)}
    stream = list(range(65, 72))
    def oload(f, d):
        dest[f] = d; s, r = divmod(f, 6); par, qt = divmod(r, 3)
        a(f'buffer_load_dwordx4 {vr(d)}, v{VL16}, s[{SWS}:{SWS+3}], s{sO+qt} offen offset:{par*1024}{cfg.old}'); vm.issue(('o', f))
        if par and s < 7:
            if qt == 0: a(f's_cmp_eq_u32 s{sRT}, {7 - s}'); a(f's_cselect_b32 s{sJ}, {(-7*16384) & 0xffffffff:#x}, s{sN}')
            a(f's_add_u32 s{sO+qt}, s{sO+qt}, s{sJ}')
    def issue(keep=0):
        while nx[0] < 48 and (nx[0] in first or len(pool) > keep) and nx[0] - cur[0] < cfg.cap:
            f = nx[0]
            oload(f, first[f] if f in first else pool.pop(0))
            nx[0] += 1
    def lread(r):
        d = pool.pop(0); home[r] = d
        ad = UORD[(r - 45) >> 1]*U + ((r - 45) & 1)*8192
        st.read(f'ds_read_b128 {vr(d)}, v{VLD + (ad >> 16)} offset:{ad & 65535}', ('w', r))
    issue()
    def mf(s, par, qt, j):
        r = s*9 + (par*4 + j if j < 4 else 8)
        acc = ACC(qt, j if j < 4 else 4 + par)
        c = '0' if s == 0 and (par == 0 or j == 4) else vr(acc)
        a(f'{MF} {vr(acc)}, {vr(home[r])}, {vr(dest[s*6 + par*3 + qt])}, {c}')
    for j in range(5):
        for par in range(2):
            for qt in range(3):
                if j == 0: vmwait(a, vm, lambda t: t == ('o', par*3 + qt))
                if j == 0 and par == 0 and qt == 0: st2(a, cfg, 1, True)
                mf(0, par, qt, j)
                if j == 4 and par*3 + qt >= 2:
                    pool.append(dest[par*3 + qt]); cur[0] = par*3 + qt + 1; issue()
    for s in range(1, 8):
        if s == 4: st2(a, cfg, 6)
        if s in cfg.obar: a('s_barrier')
        for par in range(2):
            for qt in range(3):
                f = s*6 + par*3 + qt
                vmwait(a, vm, lambda t: t == ('o', f))
                cur[0] = f + 1
                if par == 0 and qt == 0: st2(a, cfg, s + 1, True)
                if cfg.dyn and par == 0 and qt == 0 and s in cfg.dyn: a(f's_setprio {cfg.dyn[s]}')
                if qt == 0:
                    rows = [s*9 + par*4 + j for j in range(4)] + [s*9 + 8]
                    lr = [('w', r) for r in rows if 45 <= r < 65]
                    if lr: st.wait(lr)
                    sr = [r for r in rows if r >= 65]
                    if sr: vmwait(a, vm, lambda t: t[0] == 'w' and t[1] in sr)
                for j in range(5): mf(s, par, qt, j)
                pool.append(dest[f])
                if qt == 2:
                    pool += [home[s*9 + par*4 + j] for j in range(4)]
                    if par: pool.append(home[s*9 + 8])
                    for _ in range(cfg.nst):
                        if not (stream and pool): break
                        r = stream.pop(0); home[r] = pool.pop(0); w_load(a, vm, r, home[r])
                    want = [r for r in [(s+1)*9 + par*4 + j for j in range(4)] + ([(s+1)*9 + 8] if par == 0 else []) if 45 <= r < 65]
                    for r in want: lread(r)
                issue()
    st2(a, cfg, 7)
    t2 = 2
    for t in sorted(range(12), key=lambda t: t % 3): a(f'ds_write_b128 v{VLD + (t >> 3)}, {vr(180 + 4*t)} offset:{(t & 7)*8192}')
    a('s_mov_b32 exec_hi, 0')
    for qt in range(3): a(f'ds_write_b128 v{VLD+1}, {vr(ACC(qt, 4))} offset:{(4 + qt)*8192}')
    a('s_not_b64 exec, exec')
    for qt in range(3): a(f'ds_write_b128 v{VLD+1}, {vr(ACC(qt, 5))} offset:{(4 + qt)*8192}')
    a('s_mov_b64 exec, -1')
    sq = sKX
    a(f's_lshl_b32 s{sT}, s{sW}, 13')
    a(f'v_add_u32 v{t2}, s{sT}, v{VL16}'); a(f'v_add_u32 v{t2+1}, 65536, v{t2}')
    a(f's_mul_i32 s{sCS}, s{sCS}, 144')
    for tt in range(2):
        a(f's_add_u32 s{sT}, s{sW}, {8*tt}')
        a(f's_mul_i32 s{sT2}, s{sT}, 86'); a(f's_lshr_b32 s{sT2}, s{sT2}, 8')
        a(f's_sub_u32 s{sJ}, s{sR}, s{sT2}'); a(f's_mul_i32 s{sJ}, s{sJ}, 3'); a(f's_add_u32 s{sT}, s{sT}, s{sJ}')
        a(f's_mul_i32 s{sT}, s{sT}, {16*1152}')
        a(f's_lshl_b32 s{sT2}, s{sT2}, 5'); a(f's_add_u32 s{sT}, s{sT}, s{sT2}'); a(f's_add_u32 s{sq+tt}, s{sT}, s{sCS}')
    a(f'v_bfe_u32 v4, v{VL16}, 4, 4'); a('v_mul_u32_u24 v4, 1152, v4'); a(f'v_lshrrev_b32 v5, 8, v{VL16}'); a('v_lshl_add_u32 v4, v5, 3, v4')
    a('s_waitcnt lgkmcnt(0)')
    a('s_barrier')
    st2(a, cfg, 8)
    for tt in range(2):
        for p in range(8): a(f'ds_read_b128 {vr(8 + (tt*8+p)*4)}, v{t2+tt} offset:{p*1024}')
    for tt in range(2):
        a(f's_waitcnt lgkmcnt({8 - 8*tt})')
        b = 8 + tt*32
        for stp in (16, 8, 4):
            for r in range(0, stp, 2): a(f'v_pk_add_f32 v[{b+r}:{b+r+1}], v[{b+r}:{b+r+1}], v[{b+stp+r}:{b+stp+r+1}]')
        if tt:
            a(f's_cmp_lt_u32 s{sW}, 4'); a('s_cbranch_scc1 L_full')
            a(f's_cmp_eq_u32 s{sW}, 7'); a('s_cbranch_scc1 L_fin')
            for r in range(4): a(f'v_mov_b32 v{b+4+r}, v{b+r}')
            a('s_nop 1')
            for r in range(4): a(f'v_permlane32_swap_b32 v{b+r}, v{b+4+r}')
            a('s_nop 0')
            for r in range(4): a(f'v_add_f32 v{b+r}, v{b+r}, v{b+4+r}')
            a('s_mov_b32 exec_hi, 0')
            a.label('L_full')
        a(f'v_cvt_pk_bf16_f32 v{b}, v{b}, v{b+1}'); a(f'v_cvt_pk_bf16_f32 v{b+1}, v{b+2}, v{b+3}')
        a(f'buffer_store_dwordx2 v[{b}:{b+1}], v4, s[{SOUT}:{SOUT+3}], s{sq+tt} offen')
    a.label('L_fin')
    if cfg.stamps:
        a('s_mov_b64 exec, -1')
        a('s_waitcnt vmcnt(0)')
        st2(a, cfg, 9)
        a(f's_memrealtime s[{sMT}:{sMT+1}]')
        a('s_waitcnt lgkmcnt(0)')
        a('v_mov_b32 v6, 0')
        for i in range(10): a(f'v_writelane_b32 v6, s{S2+2*i}, {i}')
        a(f'v_writelane_b32 v6, s{sMT+2}, 14'); a(f'v_writelane_b32 v6, s{sMT}, 15')
        a(f'v_lshrrev_b32 v7, 2, v{VL16}')
        a(f's_lshl_b32 s{sT}, s2, 9'); a(f's_lshl_b32 s{sT2}, s{sW}, 6'); a(f's_add_u32 s{sT}, s{sT}, s{sT2}'); a(f's_add_u32 s{sT}, s{sT}, {STAMP_OFF + (1 << 20)}')
        a('s_mov_b64 exec, 0xffff')
        a(f'buffer_store_dword v6, v7, s[{SWS}:{SWS+3}], s{sT} offen')
    a('s_endpgm')

class Stream:
    def __init__(s, a): s.a = a; s.q = []
    def read(s, txt, tag): s.a(txt); s.q.append(tag)
    def wait(s, tags):
        last = -1
        for i, t in enumerate(s.q):
            if t in tags: last = i
        assert last >= 0, tags
        n = len(s.q) - 1 - last
        s.a(f's_waitcnt lgkmcnt({min(n, 15)})')

def conv_list(k):
    u, qt = divmod(k, 3)
    s0 = QA(qt, u, 0); s1 = s0 + 4
    m = f's[{sODD}:{sODD+1}]'
    l = [f'v_mul_f32 v{s0+r}, s{sSCALE}, v{s0+r}' for r in range(8)]
    l += [f'v_cvt_pk_bf16_f32 v{s0}, v{s0}, v{s0+1}', f'v_cvt_pk_bf16_f32 v{s0+1}, v{s0+2}, v{s0+3}',
          f'v_cvt_pk_bf16_f32 v{s1}, v{s1}, v{s1+1}', f'v_cvt_pk_bf16_f32 v{s1+1}, v{s1+2}, v{s1+3}',
          f'v_cndmask_b32 v{s0+2}, v{s1}, v{s0}, {m}', f'v_cndmask_b32 v{s0+3}, v{s1+1}, v{s0+1}, {m}',
          f'v_cndmask_b32 v{s0}, v{s0}, v{s1}, {m}', f'v_cndmask_b32 v{s0+1}, v{s0+1}, v{s1+1}, {m}']
    return l

def sm_gaps(pb):
    d = {}
    for gi in range(6):
        T, qt = divmod(gi, 3)
        s = 13 + 8*gi; S = S_(qt, T); P = P_(pb, qt) + 2*T
        for r in range(4):
            d.setdefault(s+2*r, []).append(f'v_exp_f32 v{S+r}, v{S+r}')
            d.setdefault(s+2*r+1, []).append(f'v_add_f32 v{L_(qt)}, v{L_(qt)}, v{S+r}')
        d[s+3].append(f'v_cvt_pk_bf16_f32 v{P}, v{S}, v{S+1}')
        d[s+7].append(f'v_cvt_pk_bf16_f32 v{P+1}, v{S+2}, v{S+3}')
    return d

def kread(f, half):
    T, u = divmod(f, 4)
    return f'ds_read_b128 {vr(R_(f))}, v{AK+u} offset:{half*8192 + T*1024}'
def vread(v, part, half):
    d = R_(v) + 2*part
    return f'ds_read_b64_tr_b16 v[{d}:{d+1}], v{AV+v} offset:{half*8192 + part*1024}'

def compute(a, cfg):
    lane = TMP+4; t0, t1, t2, t3 = 192, 193, 194, 195
    r_, c_, t4 = 196, 197, 198
    LA = cfg.LA
    a(f's_setprio {cfg.prio}')
    a(f'v_mov_b32 v{lane}, v1')
    a(f's_sub_u32 s{sHH}, s{sW}, 4')
    a(f'v_and_b32 v{t0}, 15, v{lane}')
    a(f'v_lshrrev_b32 v{t2}, 4, v{lane}')
    a(f's_mul_i32 s{sT}, s{sHH}, {48*128}')
    a(f'v_lshl_add_u32 v{t1}, v{t0}, 7, s{sT}')
    a(f'v_lshrrev_b32 v{t3}, 1, v{t0}')
    a(f'v_xor_b32 v{t3}, v{t3}, v{t2}')
    a(f'v_lshl_add_u32 v{AX}, v{t3}, 4, v{t1}')
    a(f'v_xor_b32 v{AX+1}, 64, v{AX}')
    a(f'v_and_b32 v{t1}, 3, v{t0}')
    a(f'v_lshrrev_b32 v{t3}, 2, v{t0}')
    a(f'v_lshl_add_u32 v{t1}, v{t3}, 3, v{t1}')
    a(f'v_lshlrev_b32 v{t1}, 8, v{t1}')
    a(f'v_xor_b32 v{t3}, v{t0}, v{t2}')
    a(f'v_lshl_add_u32 v{AKB}, v{t3}, 4, v{t1}')
    a(f'v_bfe_u32 v{r_}, v{lane}, 2, 2')
    a(f'v_and_b32 v{c_}, 3, v{lane}')
    a(f'v_lshl_add_u32 v{t1}, v{t2}, 3, v{r_}')
    a(f'v_lshlrev_b32 v{t1}, 8, v{t1}')
    a(f'v_and_b32 v{t0}, 1, v{t2}')
    a(f'v_lshl_or_b32 v{t3}, v{t0}, 2, v{r_}')
    a(f'v_lshlrev_b32 v{t3}, 5, v{t3}')
    a(f'v_lshl_or_b32 v{t3}, v{c_}, 3, v{t3}')
    a(f'v_add_u32 v{AVB}, v{t3}, v{t1}')
    a(f'v_and_b32 v{t3}, 1, v{r_}')
    a(f'v_xor_b32 v{t3}, v{t3}, v{c_}')
    a(f'v_lshrrev_b32 v{t4}, 1, v{r_}')
    a(f'v_lshl_or_b32 v{t3}, v{t4}, 2, v{t3}')
    a(f'v_lshl_or_b32 v{t3}, v{t0}, 3, v{t3}')
    a(f'v_lshlrev_b32 v{t3}, 4, v{t3}')
    a(f'v_and_b32 v{t4}, 1, v{c_}')
    a(f'v_lshl_or_b32 v{t3}, v{t4}, 3, v{t3}')
    a(f'v_add_u32 v{t3}, v{t3}, v{t1}')
    a(f'v_add_u32 v{t3}, {WBASE + 4*8192}, v{t3}')
    for f in range(8): a(f'v_xor_b32 v{AW+f}, {((f >> 1) << 6) | ((f & 1) << 3)}, v{t3}')
    a(f'v_cmp_eq_u32 s[{sODD}:{sODD+1}], 1, v{t0}')
    a(f's_mov_b32 s{sTHR}, {f32bits(THR):#x}')
    a(f's_mov_b32 s{sSCALE}, {f32bits(SCALE):#x}')
    a(f's_mov_b32 s{sREDO}, 0')
    a(f's_mov_b32 s{sWL}, 4'); a(f's_mov_b32 s{sXL}, 0'); a(f's_mov_b32 s{sI}, 9')
    a(f's_mul_i32 s{sOB}, s{sB}, 12'); a(f's_mul_i32 s{sT}, s{sHH}, 3'); a(f's_add_u32 s{sOB}, s{sOB}, s{sT}')
    a(f's_lshl_b32 s{sOB}, s{sOB}, 5'); a(f's_add_u32 s{sOB}, s{sOB}, s{sH}'); a(f's_lshl_b32 s{sOB}, s{sOB}, 12')
    a(f's_add_u32 s{sOB+1}, s{sOB}, 131072'); a(f's_add_u32 s{sOB+2}, s{sOB}, 262144')
    a('s_waitcnt lgkmcnt(0)')
    srd(a, SWS, 18, 268435456)
    op_scalars(a, cfg)
    if cfg.touch:
        a(f's_cmp_lg_u32 s{sW}, 4'); a('s_cbranch_scc1 L_notouch')
        srd(a, SOUT, 14, 1536*1152)
        a('s_mov_b64 exec, 0xffff')
        a(f'v_lshlrev_b32 v{TMP}, 17, v{lane}')
        a(f'buffer_load_dword v0, v{TMP}, s[{SWS}:{SWS+3}], s{sOB} offen sc1')
        a(f'v_lshlrev_b32 v{TMP+1}, 15, v{lane}')
        a(f'buffer_load_dword v1, v{TMP+1}, s[{SWS}:{SWS+3}], s{sO} offen sc1')
        a(f'v_mul_u32_u24 v{TMP+2}, 40960, v{lane}')
        a(f'buffer_load_dword v2, v{TMP+2}, s[{SWS}:{SWS+3}], s{sWB} offen sc1')
        a('s_mov_b64 exec, 3')
        a(f'v_lshlrev_b32 v{TMP+3}, 20, v{lane}')
        a(f's_mov_b32 s{sT}, {FLAG_OFF}')
        a(f'buffer_load_dword v3, v{TMP+3}, s[{SWS}:{SWS+3}], s{sT} offen sc1')
        a(f'v_mul_u32_u24 v{L_(0)}, 55000, v{lane}')
        a(f's_mul_i32 s{sT}, s{sR}, {48*1152}')
        a(f'buffer_load_dword v4, v{L_(0)}, s[{SOUT}:{SOUT+3}], s{sT} offen sc1')
        a('s_mov_b64 exec, -1')
        a.label('L_notouch')
    zr = list(range(6, 92, 2)) + list(range(96, 224, 2)) + list(range(236, 248, 2))
    for r in zr: a(f'v_pk_mov_b32 v[{r}:{r+1}], 0, 0')
    def wstep():
        return [f's_add_u32 s{sWL}, s{sWL}, 1', f's_cmp_eq_u32 s{sWL}, 7', f's_cselect_b32 s{sDW}, {(-6*8192) & 0xffffffff:#x}, s{sN}', f's_cselect_b32 s{sWL}, 0, s{sWL}']
    a(f's_mov_b32 s{sN}, 8192')
    a(f's_mov_b32 s{sJ}, {XSLOT}')
    def p1_mfma(fr, qt):
        f = fr % 16; par = f >> 3; tile = f & 7
        acc = QA(qt, tile >> 1, tile & 1)
        return f'{MF} {vr(acc)}, {vr(R_(f))}, {vr(XF(par, qt))}, {vr(acc)}'
    def wread(f, hh):
        d = R_(f) + 2*hh
        return f'ds_read_b64_tr_b16 v[{d}:{d+1}], v{AW + (f & 7)} offset:{hh*1024}'
    st = Stream(a)
    def p1_body(emit):
        for p in range(16):
            fr = p - LA
            for qt in range(3):
                if qt == 0:
                    tags = [('w', fr % 16)]
                    if fr % 8 == 0: tags += [('x', (fr % 16) >> 3, 2)]
                    if emit: st.wait(tags)
                if emit: a(p1_mfma(fr, qt))
                if qt < 2:
                    if emit: st.read(wread(p, qt), ('w', p))
                    else: st.q.append(('w', p))
                    if qt == 1 and emit: a(f'v_add_u32 v{AW + (p & 7)}, s{sDW}, v{AW + (p & 7)}')
                else:
                    xi = None
                    if p < 3: xi = (0, p)
                    elif LA + 1 <= p < LA + 4: xi = (1, p - LA - 1)
                    if xi:
                        if emit: st.read(f'ds_read_b128 {vr(XF(*xi))}, v{AX + xi[0]} offset:{xi[1]*2048}', ('x',) + xi)
                        else: st.q.append(('x',) + xi)
                        if xi[1] == 2 and emit: a(f'v_add_u32 v{AX + xi[0]}, s{sDX}, v{AX + xi[0]}')
                    if emit and p == 7:
                        for x in wstep(): a(x)
                    if emit and p == 14:
                        a(f's_sub_u32 s{sI}, s{sI}, 1')
    p1_body(False)
    a.label('L_p1')
    a('s_barrier')
    for x in wstep(): a(x)
    a(f's_add_u32 s{sXL}, s{sXL}, 1'); a(f's_cmp_eq_u32 s{sXL}, 3'); a(f's_cselect_b32 s{sDX}, {(-2*XSLOT) & 0xffffffff:#x}, s{sJ}'); a(f's_cselect_b32 s{sXL}, 0, s{sXL}')
    p1_body(True)
    a(f's_cmp_lg_u32 s{sI}, 0'); a('s_cbranch_scc1 L_p1')
    for u in range(4): a(f'v_xor_b32 v{AK+u}, {(u << 6) | (KUNIT[0]*U)}, v{AKB}')
    a('s_waitcnt vmcnt(0)')
    a('s_barrier')
    vl = []
    misc = [f'v_xor_b32 v{AV+v}, {(v << 5) | (VUNIT[0]*U)}, v{AVB}' for v in range(8)]
    misc += [f'v_pk_mov_b32 v[{r}:{r+1}], 0, 0' for r in (0, 2, 4)]
    misc += [f'v_pk_mov_b32 v[92:93], 0, 0', f'v_pk_mov_b32 v[94:95], 0, 0'] + [f'v_mov_b32 v{L_(qt)}, 0xff800000' for qt in range(3)]
    nleft = 3*LA
    for k in range(12):
        u = k // 3
        pos = (9 + 2*u) - (16 - LA)
        early = max(0, 3*(pos+1) + 3) if pos >= 0 else 0
        for x in conv_list(k): vl.append((x, early))
        if k == 2:
            for x in misc: vl.append((x, 0))
    def vidx(k): return (k+1)*16 + (len(misc) if k >= 2 else 0)
    ml = []
    for p in range(LA):
        for qt in range(3): ml.append(dict(t=p1_mfma(p - LA, qt), need=0, wait=[('w', (p - LA) % 16)] if qt == 0 else None))
    korder = [0, 1, 2, 3, 4, 5, 6, 7]
    for f in korder:
        T, u = divmod(f, 4)
        for qt in range(3):
            c = '0' if u == 0 else vr(S_(qt, T))
            ml.append(dict(t=f'{MF} {vr(S_(qt, T))}, {vr(R_(f))}, {vr(Q_(qt, u))}, {c}', need=vidx(u*3+qt) + 2 if T == 0 else 0, wait=[('k', f)] if qt == 0 else None))
    mx = []
    for qt in range(3): mx.append(f'v_max3_f32 v{L_(qt)}, v{L_(qt)}, v{S_(qt,0)}, v{S_(qt,0)+1}')
    for qt in range(3): mx.append(f'v_max3_f32 v{L_(qt)}, v{L_(qt)}, v{S_(qt,0)+2}, v{S_(qt,0)+3}')
    mx += g1.xreduce('v_max_f32', [L_(0), L_(1), L_(2)], [TMP, TMP+1, TMP+2])
    for r in range(4):
        for qt in range(3): mx.append(f'v_sub_f32 v{S_(qt,0)+r}, v{S_(qt,0)+r}, v{L_(qt)}')
    for r in range(4):
        for qt in range(3): mx.append(f'v_sub_f32 v{MN(qt)+r}, 0, v{L_(qt)}')
    for qt in range(3): mx.append(f'v_mov_b32 v{L_(qt)}, 0')
    nT0 = nleft + 12
    kr = {}
    for f in range(8):
        pos = f - (8 - LA)
        kr.setdefault(max(0, 3*(pos+1)), []).append(f)
    vi = 0
    for mi, m in enumerate(ml[:nT0]):
        for f in kr.get(mi, []): st.read(kread(f, 0), ('k', f))
        while vi < min(m['need'], len(vl)):
            assert vl[vi][1] <= mi, (vi, mi)
            a(vl[vi][0]); vi += 1
        if m['need'] > len(vl): a('s_nop 1')
        if m['wait']: st.wait(m['wait'])
        a(m['t'])
        for _ in range(2):
            if vi < len(vl) and vl[vi][1] <= mi + 1: a(vl[vi][0]); vi += 1
    assert vi == len(vl)
    a.label('L_reenter')
    xi = 0
    for j, m in enumerate(ml[nT0:]):
        if m['wait']: st.wait(m['wait'])
        a(m['t'])
        if j < 4: st.read(kread(j, 1), ('K', j))
        if j >= 3:
            for _ in range(3):
                if xi < len(mx): a(mx[xi]); xi += 1
    for f in (4, 5, 6): st.read(kread(f, 1), ('K', f))
    while xi < len(mx): a(mx[xi]); xi += 1
    sm0 = sm_gaps(0)
    t1sub = [f'v_add_f32 v{S_(qt,1)+r}, v{MN(qt)}, v{S_(qt,1)+r}' for qt in range(3) for r in range(4)]
    for gq in range(13, 48):
        for x in sm0[gq]: a(x)
        if gq % 2 == 1:
            assert t1sub or True
            if t1sub: a(t1sub.pop(0))
            else: a('s_nop 0')
    kx = [KUNIT[i] ^ KUNIT[i+1] for i in range(7)] + [0]
    vx = [VUNIT[i] ^ VUNIT[i+1] for i in range(7)] + [0]
    a(f's_mov_b32 s{sKS}, {pack4(kx):#x}'); a(f's_mov_b32 s{sVS}, {pack4(vx):#x}'); a(f's_mov_b32 s{sI}, 8')
    def half(hf):
        prev = sm_gaps(hf); cur = sm_gaps(1 - hf)
        for idx in range(48):
            f, qt = divmod(idx, 3)
            if f < 8:
                T, u = divmod(f, 4)
                c = vr(MN(qt)) if u == 0 else vr(S_(qt, T))
                a(f'{MF} {vr(S_(qt, T))}, {vr(R_(f))}, {vr(Q_(qt, u))}, {c}')
            else:
                v = f - 8
                a(f'{MF} {vr(O_(qt, v))}, {vr(R_(v))}, {vr(P_(hf, qt))}, {vr(O_(qt, v))}')
            if idx % 2 == 0:
                r = (idx + 14)//2
                if r < 8: st.read(kread(r, 1 - hf), ('K', r))
                elif r < 24: st.read(vread((r-8) >> 1, (r-8) & 1, hf), ('V', (r-8) >> 1))
                else: st.read(kread(r - 24, hf), ('K', r - 24))
            else:
                if idx == 1 and hf == 0: a('s_barrier')
                if (idx + 1) % 6 == 0:
                    f2 = ((idx + 1)//3 + 1) % 16
                    st.wait([('K', f2)] if f2 < 8 else [('V', f2 - 8)])
                if hf == 0 and idx == 3:
                    a(f's_and_b32 s{sKX}, s{sKS}, 15')
                if hf == 0 and idx == 7: a(f's_lshl_b32 s{sKX}, s{sKX}, 14')
                if hf == 0 and idx == 9: a(f's_lshr_b32 s{sKS}, s{sKS}, 4')
                if hf == 0 and idx == 13: a(f's_and_b32 s{sVX}, s{sVS}, 15')
                if hf == 0 and idx == 15: a(f's_lshl_b32 s{sVX}, s{sVX}, 14')
                if hf == 0 and idx == 19: a(f's_lshr_b32 s{sVS}, s{sVS}, 4')
                if hf == 0 and idx == 43: a(f's_sub_u32 s{sI}, s{sI}, 1')
                if hf == 0 and idx == 45: a(f's_cmp_eq_u32 s{sI}, 0')
            for x in prev.get(idx + 48, []) + cur.get(idx, []): a(x)
            if idx % 4 == 2:
                if hf == 0 and 10 <= idx <= 22:
                    u = (idx - 10)//4
                    a(f'v_xor_b32 v{AK+u}, s{sKX}, v{AK+u}')
                if hf == 1 and 10 <= idx <= 38:
                    v = (idx - 10)//4
                    a(f'v_xor_b32 v{AV+v}, s{sVX}, v{AV+v}')
    st.wait([('K', 1)])
    a.label('L_p2')
    half(0)
    a('s_cbranch_scc1 L_tail')
    q_exit = list(st.q)
    half(1)
    a('s_branch L_p2')
    a.label('L_tail')
    st2(a, cfg, 0)
    st.q = q_exit
    prev = sm_gaps(1)
    rest = [x for gq in range(48, 61) for x in prev[gq]]
    vrd = [(v, part) for v in range(8) for part in range(2)]
    for i, x in enumerate(rest):
        if i < len(vrd): st.read(vread(vrd[i][0], vrd[i][1], 1), ('V', vrd[i][0]))
        a(x)
    assert len(rest) >= len(vrd)
    fin = g1.xreduce('v_add_f32', [L_(0), L_(1), L_(2)], [TMP, TMP+1, TMP+2])
    fin += [f'v_max3_f32 v{TMP}, v{L_(0)}, v{L_(1)}, v{L_(2)}', f'v_add_f32 v{TMP+1}, v{L_(0)}, v{L_(1)}']
    fin += [f'v_rcp_f32 v{L_(qt)}, v{L_(qt)}' for qt in (0, 1)]
    fin += [f'v_cmp_nge_f32 vcc, s{sTHR}, v{TMP}', f'v_cmp_u_f32 s[{sMT}:{sMT+1}], v{TMP+1}, v{L_(2)}', f'v_rcp_f32 v{L_(2)}, v{L_(2)}']
    fin += [f'v_mbcnt_lo_u32_b32 v{lane}, -1, 0', f'v_mbcnt_hi_u32_b32 v{lane}, -1, v{lane}', f'v_lshlrev_b32 v{lane}, 4, v{lane}', f's_lshl_b32 s{sT2}, s{sHH}, 2', f's_add_u32 s{sT2}, s{sT2}, {FLAG_LDS}',
            f's_or_b64 vcc, vcc, s[{sMT}:{sMT+1}]', f's_cselect_b32 s{sT}, 1, 0', f's_andn2_b32 s{sT}, s{sT}, s{sREDO}', f'v_mov_b32 v{TMP}, s{sT2}', f'v_mov_b32 v{TMP+1}, s{sT}',
            f'ds_write_b32 v{TMP}, v{TMP+1}']
    def nrm(uu):
        l = []
        for qt in range(3):
            o0 = O_(qt, 2*uu)
            l += [f'v_mul_f32 v{o0+r}, v{o0+r}, v{L_(qt)}' for r in range(8)]
            l += [f'v_cvt_pk_bf16_f32 v{o0+r}, v{o0+2*r}, v{o0+2*r+1}' for r in range(4)]
            l += [f'buffer_store_dwordx4 {vr(o0)}, v{lane}, s[{SWS}:{SWS+3}], s{sOB+qt} offen offset:{uu*1024}{cfg.ost}']
        return l
    fl = [(x, 0) for x in fin]
    for uu in range(4): fl += [(x, 6*uu + 6 + 4) for x in nrm(uu)]
    fi = 0
    for idx in range(24):
        v, qt = divmod(idx, 3)
        if qt == 0: st.wait([('V', v)])
        a(f'{MF} {vr(O_(qt, v))}, {vr(R_(v))}, {vr(P_(1, qt))}, {vr(O_(qt, v))}')
        for _ in range(3):
            if fl[fi][1] <= idx + 1:
                a(fl[fi][0])
                if fl[fi][0].startswith('ds_write'): st.q.append(('fl',))
                fi += 1
        if idx == 21:
            assert fi >= len(fin)
            a('s_waitcnt lgkmcnt(0)')
            a('s_barrier')
            a(f'v_mov_b32 v192, {FLAG_LDS}')
            a(f'ds_read_b128 {vr(192)}, v192')
    while fi < len(fl): a(fl[fi][0]); fi += 1
    st2(a, cfg, 1)
    a('s_waitcnt lgkmcnt(0)')
    a('v_or3_b32 v192, v192, v193, v194')
    a('v_or_b32 v192, v192, v195')
    a('s_nop 0')
    a(f'v_readfirstlane_b32 s{sT}, v192')
    a('s_nop 0')
    a(f's_cmp_lg_u32 s{sT}, 0')
    a('s_cbranch_scc1 L_redo')
    vm = VM2()
    vm.issue(('st',))
    a(f'v_mov_b32 v{VL16}, v{lane}')
    Wrap.cur = None
    for r in range(cfg.nraw1): w_load(a, vm, r)
    op_consts2(a)
    a(f's_setprio {cfg.oprio}')
    vmwait(a, vm, lambda t: t == ('st',))
    st2(a, cfg, 2)
    a('s_barrier')
    st2(a, cfg, 3)
    for r in range(cfg.nraw1, 45): w_load(a, vm, r)
    oproj(a, cfg)
    a.label('L_redo')
    a(f's_mov_b32 s{sREDO}, 1')
    a(f's_lshl_b32 s{sT}, s{sB}, 5'); a(f's_add_u32 s{sT}, s{sT}, s{sH}'); a(f's_lshl_b32 s{sT}, s{sT}, 17')
    a(f's_add_u32 s{SK}, s6, s{sT}'); a(f's_addc_u32 s{SK+1}, s7, 0'); a(f's_mov_b32 s{SK+2}, 131072'); a(f's_mov_b32 s{SK+3}, 0x00020000')
    a('s_waitcnt vmcnt(0)')
    a('s_barrier')
    a(f'v_lshrrev_b32 v{lane}, 4, v{lane}')
    a(f'v_and_b32 v{TMP}, 15, v{lane}'); a(f'v_lshlrev_b32 v{TMP}, 8, v{TMP}')
    a(f'v_lshrrev_b32 v{TMP+1}, 4, v{lane}'); a(f'v_lshl_add_u32 v{TMP}, v{TMP+1}, 4, v{TMP}')
    for qt in range(3): a(f'v_mov_b32 v{L_(qt)}, 0xff800000')
    for r in range(0, 96, 2): a(f'v_pk_mov_b32 v[{r}:{r+1}], 0, 0')
    a(f's_mov_b32 s{sJ}, 0')
    a.label('L_redo_max')
    for u in range(4): a(f'buffer_load_dwordx4 {vr(R_(u))}, v{TMP}, s[{SK}:{SK+3}], s{sJ} offen offset:{u*64}')
    a('s_waitcnt vmcnt(0)')
    for u in range(4):
        for qt in range(3):
            c = '0' if u == 0 else vr(S_(qt, 0))
            a(f'{MF} {vr(S_(qt, 0))}, {vr(R_(u))}, {vr(Q_(qt, u))}, {c}')
    a('s_nop 7'); a('s_nop 7')
    for x in mx[:6]: a(x)
    a(f's_add_u32 s{sJ}, s{sJ}, 4096'); a(f's_cmp_lt_u32 s{sJ}, 131072'); a('s_cbranch_scc1 L_redo_max')
    for u in range(4): a(f'v_xor_b32 v{AK+u}, {(KUNIT[7] ^ KUNIT[0])*U}, v{AK+u}')
    for v in range(8): a(f'v_xor_b32 v{AV+v}, {(VUNIT[7] ^ VUNIT[0])*U}, v{AV+v}')
    a('s_barrier')
    for f in range(8): a(kread(f, 0))
    a('s_waitcnt lgkmcnt(0)')
    for m in ml[nleft:nT0]: a(m['t'])
    a('s_branch L_reenter')

def kernel_a(cfg):
    a = Asm()
    a('s_cmp_ge_u32 s2, 256'); a('s_cbranch_scc1 L_endA')
    a('s_load_dwordx8 s[4:11], s[0:1], 0')
    a('s_load_dwordx8 s[12:19], s[0:1], 32')
    a('v_lshrrev_b32 v2, 6, v0')
    a('v_and_b32 v1, 63, v0')
    a(f'v_readfirstlane_b32 s{sW}, v2')
    if cfg.stamps:
        a(f's_memrealtime s[{sMT}:{sMT+1}]'); a(f's_memtime s[{sMT+2}:{sMT+3}]'); a('s_waitcnt lgkmcnt(0)')
        a(f'v_mov_b32 v{STV}, 0')
        a(f'v_writelane_b32 v{STV}, s{sMT}, 62'); a(f'v_writelane_b32 v{STV}, s{sMT+2}, 60')
    a(f's_lshr_b32 s{sT}, s2, 3')
    if cfg.mapping == 0:
        a(f's_and_b32 s{sH}, s2, 7'); a(f's_lshl_b32 s{sH}, s{sH}, 2'); a(f's_and_b32 s{sT}, s{sT}, 3')
        a(f's_add_u32 s{sH}, s{sH}, s{sT}')
        a(f's_lshr_b32 s{sB}, s2, 5')
        a(f's_lshl_b32 s{sC}, s{sT}, 1'); a(f's_add_u32 s{sC}, s{sC}, s{sB}')
    elif cfg.mapping == 2:
        a(f's_and_b32 s{sB}, s2, 7'); a(f's_mov_b32 s{sH}, s{sT}')
        a(f's_mul_i32 s{sT2}, s{sT}, 57'); a(f's_lshr_b32 s{sT2}, s{sT2}, 9'); a(f's_mul_i32 s{sT2}, s{sT2}, 9'); a(f's_sub_u32 s{sC}, s{sT}, s{sT2}')
    else:
        a(f's_and_b32 s{sB}, s2, 1'); a(f's_lshl_b32 s{sB}, s{sB}, 2'); a(f's_and_b32 s{sT}, s{sT}, 3'); a(f's_add_u32 s{sB}, s{sB}, s{sT}')
        a(f's_and_b32 s{sH}, s2, 6'); a(f's_lshl_b32 s{sH}, s{sH}, 2'); a(f's_lshr_b32 s{sT2}, s2, 5'); a(f's_add_u32 s{sH}, s{sH}, s{sT2}')
        a(f's_lshl_b32 s{sC}, s{sT}, 1'); a(f's_add_u32 s{sC}, s{sC}, s{sT2}')
    a(f's_cmp_ge_u32 s{sC}, 9'); a(f's_cselect_b32 s{sT2}, 9, 0'); a(f's_sub_u32 s{sC}, s{sC}, s{sT2}')
    if cfg.rot1 == 0: a(f's_mov_b32 s{sC}, 0')
    if cfg.rot1 == 2: a(f's_and_b32 s{sC}, s{sC}, 1')
    if cfg.rot1 == 3: a(f's_and_b32 s{sC}, s{sC}, 1'); a(f's_mul_i32 s{sC}, s{sC}, 4')
    a(f's_and_b32 s{sHH}, s{sW}, 1')
    a(f's_mov_b32 s{sN}, 0')
    a(f's_cmp_ge_u32 s{sW}, 4'); a('s_cbranch_scc1 L_compute')
    a(f's_cmp_ge_u32 s{sW}, 2'); a('s_cbranch_scc1 L_hkv')
    helper_xw(a, cfg)
    a.label('L_hkv')
    helper_kv(a, cfg)
    helper_p2(a, cfg)
    a.label('L_compute')
    compute(a, cfg)
    a.label('L_endA')
    a('s_endpgm')
    return a.text()

def build(cfg):
    ka = kernel_a(cfg)
    hazard.check(ka)
    return build_file([dict(name='standalone__mha_block_cached__near_ridge_kernel', body=ka, grid=256, block=512, lds=163840, vgpr=256, single=True)])

if __name__ == '__main__':
    cfg = Cfg()
    out = sys.argv[1]
    for kv in sys.argv[2:]:
        k, v = kv.split('=', 1)
        setattr(cfg, k, eval(v))
    open(out, 'w').write(build(cfg))
```

```python
import sys, math, struct
from asmlib import *
import hazard
import gen as g1

def f32bits(x): return struct.unpack('<I', struct.pack('<f', x))[0]
U = 16384
SCALE = 128 ** -0.5 * math.log2(math.e)
THR = 2.0 ** 24
STAMP_OFF = 200 << 20
def vr(b, n=4): return f'v[{b}:{b+n-1}]'
MF = 'v_mfma_f32_16x16x32_bf16'

def O_(qt, v): return (qt*8 + v)*4
def QA(qt, u, T): return 96 + (u*3+qt)*8 + 4*T
def Q_(qt, u): return QA(qt, u, 0)
def S_(qt, T): return QA(qt, T, 1)
def P_(pb, qt): return QA(qt, 2+pb, 1)
RING = 192
def R_(f): return RING + 4*(f % 8)
def XF(par, qt): return 224 + 12*par + 4*qt
AK = 224
def L_(qt): return 228 + qt
TMP = 231
def MN(qt): return 236 + 4*qt
AW = 248; AV = 248
AX = 92; AKB = 94; AVB = 95
XSLOT = 24576; WBASE = 73728
KUNIT = [8, 0, 1, 3, 8, 0, 1, 3]
VUNIT = [9, 5, 2, 4, 9, 5, 2, 4]
FLAG_LDS = 3*U
FLAG_OFF = 16 << 20
PFLAG_OFF = 17 << 20
PW_OFF = 20 << 20
def ACC(qt, j): return 180 + (j*3 + qt)*4
def WROW(r):
    if r == 8: return ACC(2, 5)
    if r < 8: return ACC(r >> 2, (r & 3) + 1)
    return (r - 9)*4
OPOOL = list(range(144, 180, 4))
VL16, VLD = 252, 253
VNON = 144; VPL = 146; VKQ = 148; VVQ = 150; VHT = 152
UORD = [6, 7, 8, 9, 0, 5, 1, 2, 3, 4]
SWO, SOUT, SDBG = 20, 32, 32
sR, sCS, sWB, sWD, sO = 74, 75, 76, 77, 78
sRT = 67; sOE = 81
S2 = 82
STV = 160
SX, SK, SV, SWQ, SWS = 20, 24, 28, 32, 36
sW, sB, sH, sC, sT, sT2, sHH = 40, 41, 42, 43, 44, 45, 46
sI, sN, sWL, sXL, sDW, sDX, sKX, sVX, sKS, sVS = 47, 48, 49, 50, 51, 52, 53, 54, 55, 56
sTHR, sSCALE, sOB, sREDO, sMASK, sTMASK, sJ, sG = 57, 58, 59, 62, 63, 64, 65, 66
sODD = 68
sMT = 70

class Cfg:
    stamps = False
    mapping = 1
    kv_nt = True
    LA = 5
    prio = 3
    oprio = 0
    hprio = 0
    cmap = 1
    inv = False
    rotr = 0; rotc = 0; rotm = 0; swap = 0
    touch = 0
    rot1 = 1
    fine = 0; cap = 8; dbgR = 0; nst = 1; obar = (); tlbo = 0; dbgO = 0; dyn = 0
    ost = ' sc1'; fst = ' sc1'; old = ' sc1'
    qm = ''; xm = ''; wom = ''; pst = ' sc1'; outm = ''
    nraw1 = 20
    nostg = ()
    stg = None
    ksched = {1: ['pl'], 2: ['non'], 3: ['ps'], 4: ['s0-16'], 5: ['pw'], 6: ['pf', 's16-32'], 8: ['s32-48'], 9: ['s48-64']}
    sched = {9: ['chk', 'Dkv1'], 10: ['Dkv2', 'w29-37', 'u0'], 11: ['kv4', 'Dkv3', 'w37-45'], 12: ['kv5', 'w0-9'], 13: ['kv6', 'w9-15', 'u1'], 14: ['kv7', 'w15-21', 'u2'],
             15: ['w21-29', 'u3', 'u4'], 16: ['u5', 'u6', 'y8'], 17: ['u7', 'y9'], 18: ['Y9'], 19: ['Y8']}

def pack4(l):
    v = 0
    for i, x in enumerate(l): v |= x << (4*i)
    return v

def st2(a, cfg, i, fine=False):
    if cfg.fine and not fine:
        if i == 5: i = 0
        elif i == 7: i = 9
        else: return
    elif fine and not cfg.fine: return
    if cfg.stamps: a(f's_memtime s[{S2+2*i}:{S2+2*i+1}]')

def hstamp(a, cfg, lane_expr, vreg=STV):
    if not cfg.stamps: return
    a(f's_memtime s[{sMT}:{sMT+1}]')
    if isinstance(lane_expr, str): a(f's_mov_b32 m0, {lane_expr}'); lane_expr = 'm0'
    a('s_waitcnt lgkmcnt(0)')
    a(f'v_writelane_b32 v{vreg}, s{sMT}, {lane_expr}')

def hstamp_store(a, cfg, vreg=STV):
    if not cfg.stamps: return
    a(f's_memrealtime s[{sMT}:{sMT+1}]'); a('s_waitcnt lgkmcnt(0)')
    a(f'v_writelane_b32 v{vreg}, s{sMT}, 63')
    a(f'v_mbcnt_lo_u32_b32 v161, -1, 0'); a(f'v_mbcnt_hi_u32_b32 v161, -1, v161'); a('v_lshlrev_b32 v161, 2, v161')
    a(f's_lshl_b32 s{sT}, s2, 10'); a(f's_lshl_b32 s{sT2}, s{sW}, 8'); a(f's_add_u32 s{sT}, s{sT}, s{sT2}'); a(f's_add_u32 s{sT}, s{sT}, {STAMP_OFF}')
    srd(a, SWS, 18, 268435456)
    a(f'buffer_store_dword v{vreg}, v161, s[{SWS}:{SWS+3}], s{sT} offen')

def redo_check(a, vtmp, lbl_redo):
    a(f'v_mov_b32 v{vtmp}, {FLAG_LDS}')
    a(f'ds_read_b128 {vr(vtmp+1 if False else vtmp)}, v{vtmp}')
    a('s_waitcnt lgkmcnt(0)')
    a(f'v_or3_b32 v{vtmp}, v{vtmp}, v{vtmp+1}, v{vtmp+2}')
    a(f'v_or_b32 v{vtmp}, v{vtmp}, v{vtmp+3}')
    a('s_nop 0')
    a(f'v_readfirstlane_b32 s{sT}, v{vtmp}')
    a('s_nop 0')
    a(f's_cmp_lg_u32 s{sT}, 0')
    a(f's_cbranch_scc1 {lbl_redo}')

def helper_xw(a, cfg):
    lane = 1; t0, t1, t2, t3 = 2, 3, 4, 5
    VX, VW = 8, 12
    a(f'v_lshrrev_b32 v{t0}, 3, v{lane}')
    a(f's_mul_i32 s{sT}, s{sHH}, 96')
    a(f'v_add_u32 v{t0}, s{sT}, v{t0}')
    a(f'v_mul_u32_u24 v{t0}, 1152, v{t0}')
    a(f'v_lshrrev_b32 v{t2}, 4, v{lane}')
    a(f'v_and_b32 v{t1}, 7, v{lane}')
    a(f'v_xor_b32 v{t1}, v{t1}, v{t2}')
    a(f'v_lshl_add_u32 v{VX}, v{t1}, 4, v{t0}')
    a(f'v_xor_b32 v{t1}, 4, v{t1}')
    a(f'v_lshl_add_u32 v{VX+1}, v{t1}, 4, v{t0}')
    a(f'v_add_u32 v{VX+1}, 8192, v{VX+1}')
    a(f'v_add_u32 v{VX+2}, 16384, v{VX}')
    a(f'v_add_u32 v{VX+3}, 16384, v{VX+1}')
    a(f's_lshl_b32 s{sT}, s{sHH}, 4')
    a(f'v_add_u32 v{t0}, s{sT}, v{t2}')
    a(f'v_lshlrev_b32 v{t0}, 13, v{t0}')
    a(f'v_and_b32 v{t1}, 1, v{t2}')
    a(f'v_lshrrev_b32 v{t3}, 5, v{lane}')
    a(f'v_lshl_or_b32 v{t1}, v{t3}, 2, v{t1}')
    a(f'v_and_b32 v{t3}, 15, v{lane}')
    a(f'v_xor_b32 v{t1}, v{t1}, v{t3}')
    a(f'v_lshl_add_u32 v{VW}, v{t1}, 4, v{t0}')
    a(f'v_add_u32 v{VW+1}, 31744, v{VW}')
    a(f'v_xor_b32 v{VW+2}, 128, v{VW}')
    a(f'v_add_u32 v{VW+2}, 63488, v{VW+2}')
    a(f'v_add_u32 v{VW+3}, 31744, v{VW+2}')
    a(f's_lshl_b32 s{sT}, s{sHH}, 12')
    a(f's_add_u32 s{sWL}, s{sT}, {WBASE + 4*8192}')
    a(f's_add_u32 s{sDW}, s{sT}, {WBASE + 7*8192}')
    a(f's_mul_i32 s{sXL}, s{sHH}, 12288')
    a(f's_add_u32 s{sDX}, s{sXL}, {3*XSLOT}')
    a(f's_mov_b32 s{sI}, 0')
    a(f's_mul_i32 s{sT}, s{sB}, 221184')
    a(f's_lshl_b32 s{sT2}, s{sH}, 8')
    a('s_waitcnt lgkmcnt(0)')
    a(f's_add_u32 s{SX}, s4, s{sT}'); a(f's_addc_u32 s{SX+1}, s5, 0'); a(f's_mov_b32 s{SX+2}, 221184'); a(f's_mov_b32 s{SX+3}, 0x00020000')
    a(f's_add_u32 s{SWQ}, s10, s{sT2}'); a(f's_addc_u32 s{SWQ+1}, s11, 0'); a(f's_sub_u32 s{SWQ+2}, {576*8192}, s{sT2}'); a(f's_mov_b32 s{SWQ+3}, 0x00020000')
    hstamp(a, cfg, 1)
    a.label('L_xw')
    def wl(extra):
        a(f's_mov_b32 m0, s{sWL}')
        a(f's_lshl_b32 s{sT}, s{sC}, 19')
        if extra: a(f's_add_u32 s{sT}, s{sT}, {extra}')
        for p in range(4): a(f'buffer_load_dwordx4 v{VW+p}, s[{SWQ}:{SWQ+3}], s{sT} offen offset:{p*1024}{cfg.qm} lds')
        a(f's_add_u32 s{sWL}, s{sWL}, 8192'); a(f's_cmp_eq_u32 s{sWL}, s{sDW}'); a(f's_cselect_b32 s{sT}, {7*8192}, 0'); a(f's_sub_u32 s{sWL}, s{sWL}, s{sT}')
    wl(0)
    a(f's_lshl_b32 s{sT2}, s{sC}, 7')
    for g in range(3):
        a(f's_add_u32 m0, s{sXL}, {g*4096}')
        if g: a(f's_add_u32 s{sT2}, s{sT2}, 36864')
        else: a('s_nop 0')
        for p in range(4): a(f'buffer_load_dwordx4 v{VX+p}, s[{SX}:{SX+3}], s{sT2} offen offset:{p*1024}{cfg.xm} lds')
    wl(262144)
    a(f's_add_u32 s{sXL}, s{sXL}, {XSLOT}'); a(f's_cmp_eq_u32 s{sXL}, s{sDX}'); a(f's_cselect_b32 s{sT}, {3*XSLOT}, 0'); a(f's_sub_u32 s{sXL}, s{sXL}, s{sT}')
    a(f's_add_u32 s{sC}, s{sC}, 1'); a(f's_cmp_eq_u32 s{sC}, 9'); a(f's_cselect_b32 s{sC}, 0, s{sC}')
    a(f's_add_u32 s{sI}, s{sI}, 1'); a(f's_cmp_eq_u32 s{sI}, 1'); a('s_cbranch_scc1 L_xw')
    if cfg.stamps:
        a(f's_add_u32 s{sT}, s{sI}, 40'); hstamp(a, cfg, f's{sT}')
    a('s_waitcnt vmcnt(20)')
    if cfg.stamps:
        a(f's_add_u32 s{sT}, s{sI}, 20'); hstamp(a, cfg, f's{sT}')
    a('s_barrier')
    hstamp(a, cfg, f's{sI}')
    a(f's_cmp_lt_u32 s{sI}, 9'); a('s_cbranch_scc1 L_xw')
    a('s_waitcnt vmcnt(0)')
    hstamp(a, cfg, 30)
    a('s_barrier')
    hstamp(a, cfg, 10)
    a(f's_mov_b32 s{sDMP}, 0')
    a('s_branch L_h9')

def nonce_wait(a, vn, vz, lbl):
    a(f's_mov_b32 s{sI}, 0')
    a.label(lbl)
    a(f'v_cmp_eq_u32 vcc, 0, v{vn}')
    a(f's_cbranch_vccz {lbl}_d')
    a('s_sleep 2')
    a(f'buffer_load_dwordx2 v[{vn}:{vn+1}], v{vz}, s[{SDBG}:{SDBG+3}], 0 offen sc1')
    a(f's_add_u32 s{sI}, s{sI}, 1')
    a('s_waitcnt vmcnt(0)')
    a(f's_cmp_lt_u32 s{sI}, 0x100000'); a(f's_cbranch_scc1 {lbl}')
    a.label(lbl + '_d')

def helper_kv(a, cfg):
    lane = 1; t0, t1, t2, t3 = 2, 3, 4, 5
    VK, VV, VD, VZ, VT, VTH, VL, VP, VF = 8, 12, 16, 18, 19, 20, 21, 22, 32
    nt = ' nt' if cfg.kv_nt else ''
    a(f'v_lshrrev_b32 v{t2}, 4, v{lane}')
    a(f'v_and_b32 v{t3}, 15, v{lane}')
    a(f's_lshl_b32 s{sXL}, s{sHH}, 13')
    a(f'v_lshl_add_u32 v{t1}, v{t2}, 8, s{sXL}')
    a(f'v_xor_b32 v{t0}, v{t2}, v{t3}')
    a(f'v_lshl_add_u32 v{VK}, v{t0}, 4, v{t1}')
    for j in range(1, 4): a(f'v_xor_b32 v{VK+j}, {(j << 6) | ((j >> 1) << 12)}, v{VK}')
    a(f'v_lshlrev_b32 v{t0}, 1, v{t2}')
    a(f'v_xor_b32 v{t0}, v{t0}, v{t3}')
    a(f'v_lshl_add_u32 v{VV}, v{t0}, 4, v{t1}')
    for j in range(1, 4): a(f'v_xor_b32 v{VV+j}, {((j & 1) << 7) | ((j >> 1) << 12)}, v{VV}')
    a(f'v_mov_b32 v{VZ}, 0')
    a(f's_lshl_b32 s{sT}, s{sB}, 5'); a(f's_add_u32 s{sT}, s{sT}, s{sH}'); a(f's_lshl_b32 s{sT}, s{sT}, 17')
    a('s_waitcnt lgkmcnt(0)')
    a(f's_add_u32 s{SK}, s6, s{sT}'); a(f's_addc_u32 s{SK+1}, s7, 0'); a(f's_mov_b32 s{SK+2}, 131072'); a(f's_mov_b32 s{SK+3}, 0x00020000')
    a(f's_add_u32 s{SV}, s8, s{sT}'); a(f's_addc_u32 s{SV+1}, s9, 0'); a(f's_mov_b32 s{SV+2}, 131072'); a(f's_mov_b32 s{SV+3}, 0x00020000')
    srd(a, SDBG, 16, 256)
    if cfg.touch:
        a(f'v_lshlrev_b32 v{t0}, 12, v{lane}')
        a(f's_cmp_eq_u32 s{sHH}, 0'); a(f's_cselect_b32 s{SK+2}, 131072, 0'); a(f's_cselect_b32 s{SV+2}, 0, 131072')
        a(f'buffer_load_dword v40, v{t0}, s[{SK}:{SK+3}], 0 offen sc1')
        a(f'buffer_load_dword v41, v{t0}, s[{SV}:{SV+3}], 0 offen sc1')
        a(f's_mov_b32 s{SK+2}, 131072'); a(f's_mov_b32 s{SV+2}, 131072')
    hstamp(a, cfg, 61)
    a(f's_or_b32 s{sT}, s2, s{sHH}'); a(f's_cmp_lg_u32 s{sT}, 0'); a('s_cbranch_scc1 L_kv0')
    a(f's_memrealtime s[{sKX+1}:{sKX+2}]')
    a('s_waitcnt lgkmcnt(0)')
    a(f's_or_b32 s{sKX+1}, s{sKX+1}, 1')
    a(f'v_mov_b32 v{VD}, s{sKX+1}'); a(f'v_mov_b32 v{VD+1}, s{sKX+2}')
    a('s_mov_b64 exec, 1')
    a(f'buffer_store_dwordx2 v[{VD}:{VD+1}], v{VZ}, s[{SDBG}:{SDBG+3}], 0 offen sc1')
    a('s_mov_b64 exec, -1')
    a.label('L_kv0')
    srd(a, SWO, 12, 4096*1152)
    srd(a, SWS, 18, 268435456)
    a(f'v_lshlrev_b32 v{VL}, 4, v{lane}')
    a(f's_movk_i32 s{sT}, 7282'); a(f's_movk_i32 s{sT2}, 1008')
    a(f'v_mul_u32_u24 v{t1}, s{sT}, v{lane}')
    for p in range(9):
        if p: a(f'v_add_u32 v{t0}, {64*7282*p}, v{t1}')
        a(f'v_lshrrev_b32 v{t0}, 16, v{t0 if p else t1}')
        a(f'v_mad_u32_u24 v{VP+p}, v{t0}, s{sT2}, v{VL}')
    a(f's_lshl_b32 s{sWD}, s{sHH}, 14'); a(f's_add_u32 s{sWD}, s{sWD}, {8*U}')
    a(f'v_lshrrev_b32 v{t0}, 2, v{lane}'); a(f'v_mul_u32_u24 v{t0}, 144, v{t0}'); a(f'v_and_b32 v{t1}, 3, v{lane}')
    a(f'v_lshl_add_u32 v{t0}, v{t1}, 3, v{t0}'); a(f'v_add_u32 v{VT}, s{sWD}, v{t0}')
    a(f'v_bfe_u32 v{t1}, v{lane}, 1, 1'); a(f'v_mul_u32_u24 v{t1}, {32*144 - 16}, v{t1}'); a(f'v_add_u32 v{VTH}, v{VT}, v{t1}')
    a(f's_and_b32 s{sCS}, s2, 3'); a(f's_lshl_b32 s{sCS}, s{sCS}, 1'); a(f's_add_u32 s{sCS}, s{sCS}, s{sHH}')
    a(f's_lshr_b32 s{sR}, s2, 2')
    a(f's_mul_i32 s{sO}, s{sR}, {64*1152}'); a(f's_mul_i32 s{sT}, s{sCS}, 144'); a(f's_add_u32 s{sO}, s{sO}, s{sT}')
    a(f's_mul_i32 s{sWB}, s{sCS}, 589824'); a(f's_lshr_b32 s{sT}, s{sR}, 3'); a(f's_mul_i32 s{sT}, s{sT}, {9*8192}'); a(f's_add_u32 s{sWB}, s{sWB}, s{sT}')
    a(f's_and_b32 s{sT}, s{sR}, 7'); a(f's_lshl_b32 s{sT}, s{sT}, 10'); a(f's_add_u32 s{sWB}, s{sWB}, s{sT}'); a(f's_add_u32 s{sWB}, s{sWB}, {PW_OFF}')
    if cfg.touch:
        a('s_mov_b64 exec, 3')
        a(f'v_mul_u32_u24 v{t0}, 65536, v{lane}' if False else f'v_lshlrev_b32 v{t0}, 16, v{lane}')
        a(f'buffer_load_dword v42, v{t0}, s[{SWO}:{SWO+3}], s{sO} offen sc1')
        a(f'buffer_load_dword v43, v{t0}, s[{SWS}:{SWS+3}], s{sWB} offen sc1')
        a('s_mov_b64 exec, -1')
    vm = VM2()
    a(f'v_lshl_add_u32 v{VSD}, v{lane}, 4, s{sXL}')
    a(f'v_add_u32 v{VSD+1}, 65536, v{VSD}')
    a(f's_mov_b32 s{sDMP}, 1')
    def item(it):
        if it == 'pl':
            for p in range(9):
                if p % 4 == 0:
                    a(f's_add_u32 m0, s{sWD}, {p*1024}'); a(f's_add_u32 s{sT}, s{sO}, {p*1024}')
                a(f'buffer_load_dwordx4 v{VP+p}, s[{SWO}:{SWO+3}], s{sT} offen offset:{(p & 3)*1024}{cfg.wom} lds'); vm.issue(('pl',))
        elif it == 'non':
            a(f'buffer_load_dwordx2 v[{VD}:{VD+1}], v{VZ}, s[{SDBG}:{SDBG+3}], 0 offen sc1'); vm.issue(('non',))
        elif it == 'ps':
            vmwait(a, vm, lambda t: t == ('pl',))
            for f in range(9):
                for hf in range(2):
                    d = VF + 4*f + 2*hf
                    if f < 8: a(f'ds_read_b64_tr_b16 v[{d}:{d+1}], v{VT} offset:{(f >> 2)*32*144 + hf*16*144 + (f & 3)*32}')
                    else: a(f'ds_read_b64_tr_b16 v[{d}:{d+1}], v{VTH} offset:{hf*16*144 + 128}')
            for f in range(9):
                a(f's_add_u32 s{sT}, s{sWB}, {f*8192}')
                a(f's_waitcnt lgkmcnt({min(15, 16 - 2*f)})')
                a(f'buffer_store_dwordx4 {vr(VF + 4*f)}, v{VL}, s[{SWS}:{SWS+3}], s{sT} offen{cfg.pst}'); vm.issue(('ps',))
        elif it == 'pw':
            vmwait(a, vm, lambda t: t in (('ps',), ('non',)))
            nonce_wait(a, VD, VZ, 'L_kv_non')
        elif it == 'pf':
            a(f's_cmp_lg_u32 s{sHH}, 0'); a('s_cbranch_scc1 L_kv_nf')
            a(f's_and_b32 s{sT}, s2, 3'); a(f's_lshl_b32 s{sT}, s{sT}, 6'); a(f's_add_u32 s{sT}, s{sT}, s{sR}'); a(f's_lshl_b32 s{sT}, s{sT}, 3'); a(f's_add_u32 s{sT}, s{sT}, {PFLAG_OFF}')
            a('s_mov_b64 exec, 1')
            a(f'buffer_store_dwordx2 v[{VD}:{VD+1}], v{VZ}, s[{SWS}:{SWS+3}], s{sT} offen sc1')
            a('s_mov_b64 exec, -1')
            a.label('L_kv_nf')
        elif it[0] == 's':
            f0, f1 = map(int, it[1:].split('-'))
            for f in range(f0, f1):
                j, r = divmod(f, 16); kv, p = divmod(r, 8)
                unit, srdn, vb = ((KUNIT[j], SK, VK), (VUNIT[j], SV, VV))[kv]
                if f == f0 or r == 0: a(f's_mov_b32 s{sT}, {j*16384}')
                if j not in STG:
                    if p % 4 == 0 or f == f0: a(f's_add_u32 m0, s{sXL}, {unit*U + (p & 4)*1024}'); a('s_nop 0')
                    a(f'buffer_load_dwordx4 v{vb + (p >> 1)}, s[{srdn}:{srdn+3}], s{sT} offen offset:{(p & 3)*1024}{nt} lds')
                else:
                    a(f'buffer_load_dwordx4 {vr(STG[j] + 4*r)}, v{vb + (p >> 1)}, s[{srdn}:{srdn+3}], s{sT} offen offset:{(p & 3)*1024}{nt}')
                vm.issue(('KV'[kv], j))
        elif it[0] == 'D':
            dump(a, vm, it); a('s_waitcnt lgkmcnt(0)')
    for k in range(10):
        for it in cfg.ksched.get(k, []): item(it)
        hstamp(a, cfg, 40 + k)
        if k < 9:
            a('s_barrier')
            hstamp(a, cfg, k)
    vmwait(a, vm, lambda t: t == ('K', 0))
    hstamp(a, cfg, 29)
    return vm

STG = {1: 80, 2: 176, 3: 16}
VSD = 240; sDMP = sKS
YREG = {8: [180, 184, 188, 200], 9: [212, 224, 236, 244]}
def dump(a, vm, it):
    j = int(it[-1])
    for kv in range(2):
        if 'kv'[kv] not in it: continue
        vmwait(a, vm, lambda t: t == ('KV'[kv], j))
        unit = (KUNIT, VUNIT)[kv][j]
        for p in range(8):
            ad = unit*U + p*1024
            a(f'ds_write_b128 v{VSD + (ad >> 16)}, {vr(STG[j] + 4*(kv*8 + p))} offset:{ad & 65535}')

def op_consts(a, t0):
    a(f'v_mbcnt_lo_u32_b32 v{t0}, -1, 0'); a(f'v_mbcnt_hi_u32_b32 v{t0}, -1, v{t0}')
    a(f'v_lshlrev_b32 v{VL16}, 4, v{t0}')
def op_consts2(a):
    a(f's_lshl_b32 s{sT}, s{sG}, 10')
    a(f'v_add_u32 v{VLD}, s{sT}, v{VL16}')
    a(f'v_add_u32 v{VLD+1}, 65536, v{VLD}')
    a(f'v_add_u32 v{VLD+2}, 131072, v{VLD}')

def op_scalars(a, cfg):
    if cfg.cmap == 0:
        a(f's_and_b32 s{sR}, s2, 7'); a(f's_lshl_b32 s{sR}, s{sR}, 2'); a(f's_bfe_u32 s{sT}, s2, 0x20003'); a(f's_add_u32 s{sR}, s{sR}, s{sT}')
        a(f's_lshr_b32 s{sCS}, s2, 5')
    else:
        a(f's_and_b32 s{sR}, s2, 6'); a(f's_lshl_b32 s{sR}, s{sR}, 2'); a(f's_bfe_u32 s{sT}, s2, 0x30003'); a(f's_add_u32 s{sR}, s{sR}, s{sT}')
        a(f's_lshr_b32 s{sCS}, s2, 6'); a(f's_and_b32 s{sT}, s2, 1'); a(f's_lshl_b32 s{sT}, s{sT}, 2'); a(f's_add_u32 s{sCS}, s{sCS}, s{sT}')
    a(f's_and_b32 s{sT}, s{sR}, 3'); a(f's_mul_i32 s{sT}, s{sT}, {cfg.rotr}'); a(f's_mul_i32 s{sRT}, s{sCS}, {cfg.rotc}'); a(f's_add_u32 s{sRT}, s{sRT}, s{sT}'); a(f's_and_b32 s{sRT}, s{sRT}, {cfg.rotm}')
    a(f's_and_b32 s{sT2}, s{sR}, {cfg.swap}'); a(f's_lshl_b32 s{sT2}, s{sT2}, 2'); a(f's_xor_b32 s{sG}, s{sT2}, s{sW}')
    a(f's_mul_i32 s{sWD}, s{sCS}, 589824'); a(f's_add_u32 s{sWD}, s{sWD}, {PW_OFF}')
    a(f's_mul_i32 s{sT}, s{sRT}, 73728'); a(f's_add_u32 s{sWD}, s{sWD}, s{sT}')
    a(f's_lshl_b32 s{sT}, s{sG}, 10'); a(f's_add_u32 s{sWB}, s{sWD}, s{sT}')
    a(f's_lshl_b32 s{sT}, s{sW}, 11'); a(f's_add_u32 s{sWD}, s{sWD}, s{sT}')
    a(f's_mul_i32 s{sO}, s{sR}, {0 if cfg.dbgR else 3*131072}'); a(f's_lshl_b32 s{sT}, s{sG}, 11'); a(f's_add_u32 s{sO}, s{sO}, s{sT}')
    a(f's_lshl_b32 s{sT}, s{sRT}, 14'); a(f's_add_u32 s{sO}, s{sO}, s{sT}')
    if cfg.dbgO: a(f's_add_u32 s{sO}, s{sO}, {cfg.dbgO}')
    a(f's_add_u32 s{sO+1}, s{sO}, 131072'); a(f's_add_u32 s{sO+2}, s{sO}, 262144')

class Wrap:
    cur = None
def wrapc(a, s, force=False):
    if Wrap.cur != s or force:
        a(f's_cmp_ge_u32 s{sRT}, {8 - s}'); a(f's_cselect_b32 s{sOE}, {(s - 8)*73728 & 0xffffffff:#x}, {s*73728}' if s == 0 else f's_cselect_b32 s{sOE}, 589824, 0')
        if s: a(f's_sub_u32 s{sOE}, {s*73728}, s{sOE}')
        Wrap.cur = s
def w_load(a, vm, r, d=None):
    wrapc(a, r // 9)
    a(f's_add_u32 s{sT}, s{sWB}, s{sOE}')
    if r % 9: a(f's_add_u32 s{sT}, s{sT}, {(r % 9)*8192}')
    a(f'buffer_load_dwordx4 {vr(WROW(r) if d is None else d)}, v{VL16}, s[{SWS}:{SWS+3}], s{sT} offen sc1')
    vm.issue(('w', r))
def vmwait(a, vm, pred):
    n = vm.need(pred)
    assert n is not None
    if n < vm.done:
        a(f's_waitcnt vmcnt({min(n, 63)})'); vm.done = min(n, 63)
class VM2(g1.VM):
    def __init__(s): super().__init__(); s.done = 10**6
    def issue(s, tag): super().issue(tag); s.done += 1

def helper_p2(a, cfg, vm):
    nt = ' nt' if cfg.kv_nt else ''
    pend = [False]
    def ldsw():
        if pend[0]: a('s_waitcnt lgkmcnt(0)'); pend[0] = False
    def kvq(j, sel='KV'):
        a(f's_mov_b32 s{sT}, {j*16384}')
        for (k, unit, srdn, vb) in (('K', KUNIT[j], SK, VKQ), ('V', VUNIT[j], SV, VVQ)):
            if k not in sel: continue
            a(f's_add_u32 m0, s{sXL}, {unit*U}'); a('s_nop 0')
            for p in range(4):
                a(f'buffer_load_dwordx4 v{vb + (p >> 1)}, s[{srdn}:{srdn+3}], s{sT} offen offset:{p*1024}{nt} lds')
                vm.issue((k, j))
    def item(it):
        if it == 'chk':
            a(f's_cmp_ge_u32 s{sW}, 2'); a('s_cbranch_scc1 L_h_nochk')
            a(f'v_mov_b32 v{VHT}, 0')
            a(f'buffer_load_dwordx2 v[{VNON}:{VNON+1}], v{VHT}, s[{SDBG}:{SDBG+3}], 0 offen sc1')
            a(f'v_lshrrev_b32 v{VHT+1}, 1, v{VL16}')
            a(f's_lshr_b32 s{sT}, s{sCS}, 1'); a(f's_lshl_b32 s{sT}, s{sT}, 9'); a(f's_add_u32 s{sT}, s{sT}, {PFLAG_OFF}')
            a(f'buffer_load_dwordx2 v[{VHT+2}:{VHT+3}], v{VHT+1}, s[{SWS}:{SWS+3}], s{sT} offen sc1')
            a('s_waitcnt vmcnt(0)')
            nonce_wait(a, VNON, VHT, 'L_h_non')
            a(f's_mov_b32 s{sI}, 0')
            a.label('L_h_chk')
            a(f'v_cmp_ne_u64 vcc, v[{VHT+2}:{VHT+3}], v[{VNON}:{VNON+1}]')
            a('s_cbranch_vccz L_h_chkd')
            a('s_sleep 2')
            a(f'buffer_load_dwordx2 v[{VHT+2}:{VHT+3}], v{VHT+1}, s[{SWS}:{SWS+3}], s{sT} offen sc1')
            a(f's_add_u32 s{sI}, s{sI}, 1')
            a('s_waitcnt vmcnt(0)')
            a(f's_cmp_lt_u32 s{sI}, 0x100000'); a('s_cbranch_scc1 L_h_chk')
            a.label('L_h_chkd')
            if cfg.inv:
                a(f's_cmp_lg_u32 s{sW}, 0'); a('s_cbranch_scc1 L_h_nochk')
                a('buffer_inv sc1')
            a.label('L_h_nochk')
        elif it == 'tlb':
            a(f'v_lshlrev_b32 v{VHT+4}, 8, v{VL16}')
            a(f's_mul_i32 s{sT}, s{sR}, {3*131072}'); a(f's_lshl_b32 s{sT2}, s{sHH}, 18'); a(f's_add_u32 s{sT}, s{sT}, s{sT2}')
            a(f'buffer_load_dword v{VHT+5}, v{VHT+4}, s[{SWS}:{SWS+3}], s{sT} offen offset:{cfg.tlbo} sc1')
        elif it.startswith('kv'): kvq(int(it[2:]))
        elif it[0] in 'KV': kvq(int(it[1:]), it[0])
        elif it[0] == 'D':
            lb = a.newlabel('L_nd')
            a(f's_cmp_eq_u32 s{sDMP}, 0'); a(f's_cbranch_scc1 {lb}')
            d0 = vm.done
            dump(a, vm, it)
            vm.done = d0
            a.label(lb)
            pend[0] = True
        elif it[0] == 'y':
            i = int(it[1:])
            for hr in range(2):
                r = 45 + 2*i + hr
                wrapc(a, r // 9)
                a(f's_add_u32 s{sT}, s{sWD}, s{sOE}')
                if r % 9: a(f's_add_u32 s{sT}, s{sT}, {(r % 9)*8192}')
                for p in range(2):
                    a(f'buffer_load_dwordx4 {vr(YREG[i][hr*2 + p])}, v{VL16}, s[{SWS}:{SWS+3}], s{sT} offen offset:{p*1024} sc1')
                    vm.issue(('y', i))
        elif it[0] == 'Y':
            i = int(it[1:])
            a(f's_lshr_b32 s{sT}, s{sXL}, 1'); a(f's_add_u32 s{sT}, s{sT}, {UORD[i]*U}')
            a(f'v_add_u32 v{VHT+4}, s{sT}, v{VL16}')
            vmwait(a, vm, lambda t: t == ('y', i))
            for hr in range(2):
                for p in range(2): a(f'ds_write_b128 v{VHT+4}, {vr(YREG[i][hr*2 + p])} offset:{hr*8192 + p*1024}')
            pend[0] = True
        elif it[0] == 'w':
            r0, r1 = map(int, it[1:].split('-'))
            for r in range(r0, r1): w_load(a, vm, r)
        elif it[0] == 'u':
            i = int(it[1:])
            for hr in range(2):
                r = 45 + 2*i + hr
                wrapc(a, r // 9)
                a(f's_lshr_b32 s{sT}, s{sXL}, 1'); a(f's_add_u32 m0, s{sT}, {UORD[i]*U + hr*8192}')
                a(f's_add_u32 s{sT}, s{sWD}, s{sOE}')
                if r % 9: a(f's_add_u32 s{sT}, s{sT}, {(r % 9)*8192}')
                for p in range(2):
                    a(f'buffer_load_dwordx4 v{VL16}, s[{SWS}:{SWS+3}], s{sT} offen offset:{p*1024} sc1 lds')
                    vm.issue(('u', i))
    Wrap.cur = None
    a.label('L_h9')
    a('s_barrier')
    hstamp(a, cfg, 9)
    t0, t1, t2, t3 = VHT, VHT+1, VHT+2, VHT+3
    op_scalars(a, cfg)
    op_consts(a, t0)
    op_consts2(a)
    a(f's_lshl_b32 s{sXL}, s{sW}, 12')
    a(f'v_lshrrev_b32 v{t2}, 4, v{t0}')
    a(f'v_and_b32 v{t3}, 15, v{t0}')
    a(f'v_lshl_add_u32 v{t1}, v{t2}, 8, s{sXL}')
    a(f'v_xor_b32 v{VKQ}, v{t2}, v{t3}')
    a(f'v_lshl_add_u32 v{VKQ}, v{VKQ}, 4, v{t1}')
    a(f's_lshl_b32 s{sT}, s{sHH}, 7')
    a(f'v_xor_b32 v{VKQ}, s{sT}, v{VKQ}')
    a(f'v_xor_b32 v{VKQ+1}, 64, v{VKQ}')
    a(f'v_lshlrev_b32 v{VVQ}, 1, v{t2}')
    a(f'v_xor_b32 v{VVQ}, v{VVQ}, v{t3}')
    a(f'v_lshl_add_u32 v{VVQ}, v{VVQ}, 4, v{t1}')
    a(f'v_xor_b32 v{VVQ+1}, 128, v{VVQ}')
    a(f'v_and_b32 v{VPL}, 31, v{t0}'); a(f'v_lshlrev_b32 v{VPL}, 8, v{VPL}')
    a(f's_lshl_b32 s{sT}, s{sB}, 5'); a(f's_add_u32 s{sT}, s{sT}, s{sH}'); a(f's_lshl_b32 s{sT}, s{sT}, 17')
    a(f's_add_u32 s{SK}, s6, s{sT}'); a(f's_addc_u32 s{SK+1}, s7, 0'); a(f's_mov_b32 s{SK+2}, 131072'); a(f's_mov_b32 s{SK+3}, 0x00020000')
    a(f's_add_u32 s{SV}, s8, s{sT}'); a(f's_addc_u32 s{SV+1}, s9, 0'); a(f's_mov_b32 s{SV+2}, 131072'); a(f's_mov_b32 s{SV+3}, 0x00020000')
    srd(a, SDBG, 16, 256)
    srd(a, SWS, 18, 268435456)
    a(f'v_mov_b32 v{VNON}, 0'); a(f'v_mov_b32 v{VNON+1}, 0')
    for k in range(9, 18):
        for it in cfg.sched.get(k, []): item(it)
        hstamp(a, cfg, 40 + k + 1)
        i = k - 9
        if i < 8 and not (i in STG and i+1 in STG): vmwait(a, vm, lambda t: (t == ('V', i) and i not in STG) or (t == ('K', i+1) and i+1 not in STG))
        ldsw()
        hstamp(a, cfg, 20 + k + 1)
        a('s_barrier')
        hstamp(a, cfg, k + 1)
    redo_check(a, VHT, 'L_h_redo')
    for it in cfg.sched.get(18, []): item(it)
    hstamp(a, cfg, 39)
    st2(a, cfg, 2)
    a('s_barrier')
    st2(a, cfg, 3)
    a(f's_cmp_lg_u32 s{sW}, 0'); a('s_cbranch_scc1 L_h_nosig')
    a(f's_lshl_b32 s{sT}, s{sB}, 5'); a(f's_add_u32 s{sT}, s{sT}, s{sH}'); a(f's_lshl_b32 s{sT}, s{sT}, 8'); a(f's_add_u32 s{sT}, s{sT}, {FLAG_OFF}')
    a('s_mov_b64 exec, 1')
    a(f'buffer_store_dwordx2 v[{VNON}:{VNON+1}], v{VPL}, s[{SWS}:{SWS+3}], s{sT} offen{cfg.fst}')
    a('s_mov_b64 exec, -1')
    a.label('L_h_nosig')
    hstamp(a, cfg, 19)
    hstamp_store(a, cfg)
    for it in cfg.sched.get(19, []): item(it)
    ldsw()
    a(f's_setprio {cfg.hprio}')
    a(f's_cmp_lg_u32 s{sW}, 1'); a('s_cbranch_scc1 L_h_np')
    a(f's_lshr_b32 s{sT}, s{sR}, 2'); a(f's_lshl_b32 s{sT}, s{sT}, 13'); a(f's_add_u32 s{sT}, s{sT}, {FLAG_OFF}')
    a(f's_mov_b32 s{sI}, 0')
    a.label('L_h_poll')
    a(f'buffer_load_dwordx2 v[{VHT}:{VHT+1}], v{VPL}, s[{SWS}:{SWS+3}], s{sT} offen sc1')
    a(f's_add_u32 s{sI}, s{sI}, 1')
    a('s_waitcnt vmcnt(0)')
    a(f'v_cmp_ne_u64 vcc, v[{VHT}:{VHT+1}], v[{VNON}:{VNON+1}]')
    a('s_cbranch_vccz L_op')
    a('s_sleep 1')
    a(f's_cmp_lt_u32 s{sI}, 0x100000'); a('s_cbranch_scc1 L_h_poll')
    a.label('L_h_np')
    a('s_waitcnt vmcnt(0)')
    a('s_branch L_op')
    a.label('L_h_redo')
    a('s_waitcnt vmcnt(0)')
    a('s_barrier')
    for j in range(4 if 3 in STG else 3): kvq(j)
    a(f's_mov_b32 s{sDMP}, 0')
    a('s_waitcnt vmcnt(0)')
    a('s_branch L_h9')

def oproj(a, cfg):
    a.label('L_op')
    srd(a, SOUT, 14, 1536*1152)
    a(f's_mov_b32 s{sN}, 16384')
    Wrap.cur = None
    st2(a, cfg, 4)
    a('s_barrier')
    st2(a, cfg, 5)
    vm = VM2(); st = Stream(a)
    pool = list(OPOOL); dest = {}; nx = [0]; cur = [0]
    home = {r: WROW(r) for r in range(45)}
    first = {0: ACC(0, 5), 1: ACC(1, 5)}
    stream = list(range(65, 72))
    def oload(f, d):
        dest[f] = d; s, r = divmod(f, 6); par, qt = divmod(r, 3)
        a(f'buffer_load_dwordx4 {vr(d)}, v{VL16}, s[{SWS}:{SWS+3}], s{sO+qt} offen offset:{par*1024}{cfg.old}'); vm.issue(('o', f))
        if par and s < 7:
            if qt == 0: a(f's_cmp_eq_u32 s{sRT}, {7 - s}'); a(f's_cselect_b32 s{sJ}, {(-7*16384) & 0xffffffff:#x}, s{sN}')
            a(f's_add_u32 s{sO+qt}, s{sO+qt}, s{sJ}')
    def issue(keep=0):
        while nx[0] < 48 and (nx[0] in first or len(pool) > keep) and nx[0] - cur[0] < cfg.cap:
            f = nx[0]
            oload(f, first[f] if f in first else pool.pop(0))
            nx[0] += 1
    def lread(r):
        d = pool.pop(0); home[r] = d
        ad = UORD[(r - 45) >> 1]*U + ((r - 45) & 1)*8192
        st.read(f'ds_read_b128 {vr(d)}, v{VLD + (ad >> 16)} offset:{ad & 65535}', ('w', r))
    issue()
    def mf(s, par, qt, j):
        r = s*9 + (par*4 + j if j < 4 else 8)
        acc = ACC(qt, j if j < 4 else 4 + par)
        c = '0' if s == 0 and (par == 0 or j == 4) else vr(acc)
        a(f'{MF} {vr(acc)}, {vr(home[r])}, {vr(dest[s*6 + par*3 + qt])}, {c}')
    for j in range(5):
        for par in range(2):
            for qt in range(3):
                if j == 0: vmwait(a, vm, lambda t: t == ('o', par*3 + qt))
                if j == 0 and par == 0 and qt == 0: st2(a, cfg, 1, True)
                mf(0, par, qt, j)
                if j == 4 and par*3 + qt >= 2:
                    pool.append(dest[par*3 + qt]); cur[0] = par*3 + qt + 1; issue()
    for s in range(1, 8):
        if s == 4: st2(a, cfg, 6)
        if s in cfg.obar: a('s_barrier')
        for par in range(2):
            for qt in range(3):
                f = s*6 + par*3 + qt
                vmwait(a, vm, lambda t: t == ('o', f))
                cur[0] = f + 1
                if par == 0 and qt == 0: st2(a, cfg, s + 1, True)
                if cfg.dyn and par == 0 and qt == 0 and s in cfg.dyn: a(f's_setprio {cfg.dyn[s]}')
                if qt == 0:
                    rows = [s*9 + par*4 + j for j in range(4)] + [s*9 + 8]
                    lr = [('w', r) for r in rows if 45 <= r < 65]
                    if lr: st.wait(lr)
                    sr = [r for r in rows if r >= 65]
                    if sr: vmwait(a, vm, lambda t: t[0] == 'w' and t[1] in sr)
                for j in range(5): mf(s, par, qt, j)
                pool.append(dest[f])
                if qt == 2:
                    pool += [home[s*9 + par*4 + j] for j in range(4)]
                    if par: pool.append(home[s*9 + 8])
                    for _ in range(cfg.nst):
                        if not (stream and pool): break
                        r = stream.pop(0); home[r] = pool.pop(0); w_load(a, vm, r, home[r])
                    want = [r for r in [(s+1)*9 + par*4 + j for j in range(4)] + ([(s+1)*9 + 8] if par == 0 else []) if 45 <= r < 65]
                    for r in want: lread(r)
                issue()
    st2(a, cfg, 7)
    t2 = 2
    for t in sorted(range(12), key=lambda t: t % 3): a(f'ds_write_b128 v{VLD + (t >> 3)}, {vr(180 + 4*t)} offset:{(t & 7)*8192}')
    a('s_mov_b32 exec_hi, 0')
    for qt in range(3): a(f'ds_write_b128 v{VLD+1}, {vr(ACC(qt, 4))} offset:{(4 + qt)*8192}')
    a('s_not_b64 exec, exec')
    for qt in range(3): a(f'ds_write_b128 v{VLD+1}, {vr(ACC(qt, 5))} offset:{(4 + qt)*8192}')
    a('s_mov_b64 exec, -1')
    sq = sKX
    a(f's_lshl_b32 s{sT}, s{sW}, 13')
    a(f'v_add_u32 v{t2}, s{sT}, v{VL16}'); a(f'v_add_u32 v{t2+1}, 65536, v{t2}')
    a(f's_mul_i32 s{sCS}, s{sCS}, 144')
    for tt in range(2):
        a(f's_add_u32 s{sT}, s{sW}, {8*tt}')
        a(f's_mul_i32 s{sT2}, s{sT}, 86'); a(f's_lshr_b32 s{sT2}, s{sT2}, 8')
        a(f's_sub_u32 s{sJ}, s{sR}, s{sT2}'); a(f's_mul_i32 s{sJ}, s{sJ}, 3'); a(f's_add_u32 s{sT}, s{sT}, s{sJ}')
        a(f's_mul_i32 s{sT}, s{sT}, {16*1152}')
        a(f's_lshl_b32 s{sT2}, s{sT2}, 5'); a(f's_add_u32 s{sT}, s{sT}, s{sT2}'); a(f's_add_u32 s{sq+tt}, s{sT}, s{sCS}')
    a(f'v_bfe_u32 v4, v{VL16}, 4, 4'); a('v_mul_u32_u24 v4, 1152, v4'); a(f'v_lshrrev_b32 v5, 8, v{VL16}'); a('v_lshl_add_u32 v4, v5, 3, v4')
    a('s_waitcnt lgkmcnt(0)')
    a('s_barrier')
    st2(a, cfg, 8)
    for tt in range(2):
        for p in range(8): a(f'ds_read_b128 {vr(8 + (tt*8+p)*4)}, v{t2+tt} offset:{p*1024}')
    for tt in range(2):
        a(f's_waitcnt lgkmcnt({8 - 8*tt})')
        b = 8 + tt*32
        for stp in (16, 8, 4):
            for r in range(0, stp, 2): a(f'v_pk_add_f32 v[{b+r}:{b+r+1}], v[{b+r}:{b+r+1}], v[{b+stp+r}:{b+stp+r+1}]')
        if tt:
            a(f's_cmp_lt_u32 s{sW}, 4'); a('s_cbranch_scc1 L_full')
            a(f's_cmp_eq_u32 s{sW}, 7'); a('s_cbranch_scc1 L_fin')
            for r in range(4): a(f'v_mov_b32 v{b+4+r}, v{b+r}')
            a('s_nop 1')
            for r in range(4): a(f'v_permlane32_swap_b32 v{b+r}, v{b+4+r}')
            a('s_nop 0')
            for r in range(4): a(f'v_add_f32 v{b+r}, v{b+r}, v{b+4+r}')
            a('s_mov_b32 exec_hi, 0')
            a.label('L_full')
        a(f'v_cvt_pk_bf16_f32 v{b}, v{b}, v{b+1}'); a(f'v_cvt_pk_bf16_f32 v{b+1}, v{b+2}, v{b+3}')
        a(f'buffer_store_dwordx2 v[{b}:{b+1}], v4, s[{SOUT}:{SOUT+3}], s{sq+tt} offen{cfg.outm}')
    a.label('L_fin')
    if cfg.stamps:
        a('s_mov_b64 exec, -1')
        a('s_waitcnt vmcnt(0)')
        st2(a, cfg, 9)
        a(f's_memrealtime s[{sMT}:{sMT+1}]')
        a('s_waitcnt lgkmcnt(0)')
        a('v_mov_b32 v6, 0')
        for i in range(10): a(f'v_writelane_b32 v6, s{S2+2*i}, {i}')
        a(f'v_writelane_b32 v6, s{sMT+2}, 14'); a(f'v_writelane_b32 v6, s{sMT}, 15')
        a(f'v_lshrrev_b32 v7, 2, v{VL16}')
        a(f's_lshl_b32 s{sT}, s2, 9'); a(f's_lshl_b32 s{sT2}, s{sW}, 6'); a(f's_add_u32 s{sT}, s{sT}, s{sT2}'); a(f's_add_u32 s{sT}, s{sT}, {STAMP_OFF + (1 << 20)}')
        a('s_mov_b64 exec, 0xffff')
        a(f'buffer_store_dword v6, v7, s[{SWS}:{SWS+3}], s{sT} offen')
    a('s_endpgm')

class Stream:
    def __init__(s, a): s.a = a; s.q = []
    def read(s, txt, tag): s.a(txt); s.q.append(tag)
    def wait(s, tags):
        last = -1
        for i, t in enumerate(s.q):
            if t in tags: last = i
        assert last >= 0, tags
        n = len(s.q) - 1 - last
        s.a(f's_waitcnt lgkmcnt({min(n, 15)})')

def conv_list(k):
    u, qt = divmod(k, 3)
    s0 = QA(qt, u, 0); s1 = s0 + 4
    m = f's[{sODD}:{sODD+1}]'
    l = [f'v_mul_f32 v{s0+r}, s{sSCALE}, v{s0+r}' for r in range(8)]
    l += [f'v_cvt_pk_bf16_f32 v{s0}, v{s0}, v{s0+1}', f'v_cvt_pk_bf16_f32 v{s0+1}, v{s0+2}, v{s0+3}',
          f'v_cvt_pk_bf16_f32 v{s1}, v{s1}, v{s1+1}', f'v_cvt_pk_bf16_f32 v{s1+1}, v{s1+2}, v{s1+3}',
          f'v_cndmask_b32 v{s0+2}, v{s1}, v{s0}, {m}', f'v_cndmask_b32 v{s0+3}, v{s1+1}, v{s0+1}, {m}',
          f'v_cndmask_b32 v{s0}, v{s0}, v{s1}, {m}', f'v_cndmask_b32 v{s0+1}, v{s0+1}, v{s1+1}, {m}']
    return l

def sm_gaps(pb):
    d = {}
    for gi in range(6):
        T, qt = divmod(gi, 3)
        s = 13 + 8*gi; S = S_(qt, T); P = P_(pb, qt) + 2*T
        for r in range(4):
            d.setdefault(s+2*r, []).append(f'v_exp_f32 v{S+r}, v{S+r}')
            d.setdefault(s+2*r+1, []).append(f'v_add_f32 v{L_(qt)}, v{L_(qt)}, v{S+r}')
        d[s+3].append(f'v_cvt_pk_bf16_f32 v{P}, v{S}, v{S+1}')
        d[s+7].append(f'v_cvt_pk_bf16_f32 v{P+1}, v{S+2}, v{S+3}')
    return d

def kread(f, half):
    T, u = divmod(f, 4)
    return f'ds_read_b128 {vr(R_(f))}, v{AK+u} offset:{half*8192 + T*1024}'
def vread(v, part, half):
    d = R_(v) + 2*part
    return f'ds_read_b64_tr_b16 v[{d}:{d+1}], v{AV+v} offset:{half*8192 + part*1024}'

def compute(a, cfg):
    lane = TMP+4; t0, t1, t2, t3 = 192, 193, 194, 195
    r_, c_, t4 = 196, 197, 198
    LA = cfg.LA
    a(f's_setprio {cfg.prio}')
    a(f'v_mov_b32 v{lane}, v1')
    a(f's_sub_u32 s{sHH}, s{sW}, 4')
    a(f'v_and_b32 v{t0}, 15, v{lane}')
    a(f'v_lshrrev_b32 v{t2}, 4, v{lane}')
    a(f's_mul_i32 s{sT}, s{sHH}, {48*128}')
    a(f'v_lshl_add_u32 v{t1}, v{t0}, 7, s{sT}')
    a(f'v_lshrrev_b32 v{t3}, 1, v{t0}')
    a(f'v_xor_b32 v{t3}, v{t3}, v{t2}')
    a(f'v_lshl_add_u32 v{AX}, v{t3}, 4, v{t1}')
    a(f'v_xor_b32 v{AX+1}, 64, v{AX}')
    a(f'v_and_b32 v{t1}, 3, v{t0}')
    a(f'v_lshrrev_b32 v{t3}, 2, v{t0}')
    a(f'v_lshl_add_u32 v{t1}, v{t3}, 3, v{t1}')
    a(f'v_lshlrev_b32 v{t1}, 8, v{t1}')
    a(f'v_xor_b32 v{t3}, v{t0}, v{t2}')
    a(f'v_lshl_add_u32 v{AKB}, v{t3}, 4, v{t1}')
    a(f'v_bfe_u32 v{r_}, v{lane}, 2, 2')
    a(f'v_and_b32 v{c_}, 3, v{lane}')
    a(f'v_lshl_add_u32 v{t1}, v{t2}, 3, v{r_}')
    a(f'v_lshlrev_b32 v{t1}, 8, v{t1}')
    a(f'v_and_b32 v{t0}, 1, v{t2}')
    a(f'v_lshl_or_b32 v{t3}, v{t0}, 2, v{r_}')
    a(f'v_lshlrev_b32 v{t3}, 5, v{t3}')
    a(f'v_lshl_or_b32 v{t3}, v{c_}, 3, v{t3}')
    a(f'v_add_u32 v{AVB}, v{t3}, v{t1}')
    a(f'v_and_b32 v{t3}, 1, v{r_}')
    a(f'v_xor_b32 v{t3}, v{t3}, v{c_}')
    a(f'v_lshrrev_b32 v{t4}, 1, v{r_}')
    a(f'v_lshl_or_b32 v{t3}, v{t4}, 2, v{t3}')
    a(f'v_lshl_or_b32 v{t3}, v{t0}, 3, v{t3}')
    a(f'v_lshlrev_b32 v{t3}, 4, v{t3}')
    a(f'v_and_b32 v{t4}, 1, v{c_}')
    a(f'v_lshl_or_b32 v{t3}, v{t4}, 3, v{t3}')
    a(f'v_add_u32 v{t3}, v{t3}, v{t1}')
    a(f'v_add_u32 v{t3}, {WBASE + 4*8192}, v{t3}')
    for f in range(8): a(f'v_xor_b32 v{AW+f}, {((f >> 1) << 6) | ((f & 1) << 3)}, v{t3}')
    a(f'v_cmp_eq_u32 s[{sODD}:{sODD+1}], 1, v{t0}')
    a(f's_mov_b32 s{sTHR}, {f32bits(THR):#x}')
    a(f's_mov_b32 s{sSCALE}, {f32bits(SCALE):#x}')
    a(f's_mov_b32 s{sREDO}, 0')
    a(f's_mov_b32 s{sWL}, 4'); a(f's_mov_b32 s{sXL}, 0'); a(f's_mov_b32 s{sI}, 9')
    a(f's_mul_i32 s{sOB}, s{sB}, 12'); a(f's_mul_i32 s{sT}, s{sHH}, 3'); a(f's_add_u32 s{sOB}, s{sOB}, s{sT}')
    a(f's_lshl_b32 s{sOB}, s{sOB}, 5'); a(f's_add_u32 s{sOB}, s{sOB}, s{sH}'); a(f's_lshl_b32 s{sOB}, s{sOB}, 12')
    a(f's_add_u32 s{sOB+1}, s{sOB}, 131072'); a(f's_add_u32 s{sOB+2}, s{sOB}, 262144')
    a('s_waitcnt lgkmcnt(0)')
    srd(a, SWS, 18, 268435456)
    op_scalars(a, cfg)
    if cfg.touch:
        a(f's_cmp_lg_u32 s{sW}, 4'); a('s_cbranch_scc1 L_notouch')
        srd(a, SOUT, 14, 1536*1152)
        a('s_mov_b64 exec, 0xffff')
        a(f'v_lshlrev_b32 v{TMP}, 17, v{lane}')
        a(f'buffer_load_dword v0, v{TMP}, s[{SWS}:{SWS+3}], s{sOB} offen sc1')
        a(f'v_lshlrev_b32 v{TMP+1}, 15, v{lane}')
        a(f'buffer_load_dword v1, v{TMP+1}, s[{SWS}:{SWS+3}], s{sO} offen sc1')
        a(f'v_mul_u32_u24 v{TMP+2}, 40960, v{lane}')
        a(f'buffer_load_dword v2, v{TMP+2}, s[{SWS}:{SWS+3}], s{sWB} offen sc1')
        a('s_mov_b64 exec, 3')
        a(f'v_lshlrev_b32 v{TMP+3}, 20, v{lane}')
        a(f's_mov_b32 s{sT}, {FLAG_OFF}')
        a(f'buffer_load_dword v3, v{TMP+3}, s[{SWS}:{SWS+3}], s{sT} offen sc1')
        a(f'v_mul_u32_u24 v{L_(0)}, 55000, v{lane}')
        a(f's_mul_i32 s{sT}, s{sR}, {48*1152}')
        a(f'buffer_load_dword v4, v{L_(0)}, s[{SOUT}:{SOUT+3}], s{sT} offen sc1')
        a('s_mov_b64 exec, -1')
        a.label('L_notouch')
    zr = list(range(6, 92, 2)) + list(range(96, 224, 2)) + list(range(236, 248, 2))
    for r in zr: a(f'v_pk_mov_b32 v[{r}:{r+1}], 0, 0')
    def wstep():
        return [f's_add_u32 s{sWL}, s{sWL}, 1', f's_cmp_eq_u32 s{sWL}, 7', f's_cselect_b32 s{sDW}, {(-6*8192) & 0xffffffff:#x}, s{sN}', f's_cselect_b32 s{sWL}, 0, s{sWL}']
    a(f's_mov_b32 s{sN}, 8192')
    a(f's_mov_b32 s{sJ}, {XSLOT}')
    def p1_mfma(fr, qt):
        f = fr % 16; par = f >> 3; tile = f & 7
        acc = QA(qt, tile >> 1, tile & 1)
        return f'{MF} {vr(acc)}, {vr(R_(f))}, {vr(XF(par, qt))}, {vr(acc)}'
    def wread(f, hh):
        d = R_(f) + 2*hh
        return f'ds_read_b64_tr_b16 v[{d}:{d+1}], v{AW + (f & 7)} offset:{hh*1024}'
    st = Stream(a)
    def p1_body(emit):
        for p in range(16):
            fr = p - LA
            for qt in range(3):
                if qt == 0:
                    tags = [('w', fr % 16)]
                    if fr % 8 == 0: tags += [('x', (fr % 16) >> 3, 2)]
                    if emit: st.wait(tags)
                if emit: a(p1_mfma(fr, qt))
                if qt < 2:
                    if emit: st.read(wread(p, qt), ('w', p))
                    else: st.q.append(('w', p))
                    if qt == 1 and emit: a(f'v_add_u32 v{AW + (p & 7)}, s{sDW}, v{AW + (p & 7)}')
                else:
                    xi = None
                    if p < 3: xi = (0, p)
                    elif LA + 1 <= p < LA + 4: xi = (1, p - LA - 1)
                    if xi:
                        if emit: st.read(f'ds_read_b128 {vr(XF(*xi))}, v{AX + xi[0]} offset:{xi[1]*2048}', ('x',) + xi)
                        else: st.q.append(('x',) + xi)
                        if xi[1] == 2 and emit: a(f'v_add_u32 v{AX + xi[0]}, s{sDX}, v{AX + xi[0]}')
                    if emit and p == 7:
                        for x in wstep(): a(x)
                    if emit and p == 14:
                        a(f's_sub_u32 s{sI}, s{sI}, 1')
    p1_body(False)
    a.label('L_p1')
    a('s_barrier')
    for x in wstep(): a(x)
    a(f's_add_u32 s{sXL}, s{sXL}, 1'); a(f's_cmp_eq_u32 s{sXL}, 3'); a(f's_cselect_b32 s{sDX}, {(-2*XSLOT) & 0xffffffff:#x}, s{sJ}'); a(f's_cselect_b32 s{sXL}, 0, s{sXL}')
    p1_body(True)
    a(f's_cmp_lg_u32 s{sI}, 0'); a('s_cbranch_scc1 L_p1')
    for u in range(4): a(f'v_xor_b32 v{AK+u}, {(u << 6) | (KUNIT[0]*U)}, v{AKB}')
    a('s_waitcnt vmcnt(0)')
    a('s_barrier')
    vl = []
    misc = [f'v_xor_b32 v{AV+v}, {(v << 5) | (VUNIT[0]*U)}, v{AVB}' for v in range(8)]
    misc += [f'v_pk_mov_b32 v[{r}:{r+1}], 0, 0' for r in (0, 2, 4)]
    misc += [f'v_pk_mov_b32 v[92:93], 0, 0', f'v_pk_mov_b32 v[94:95], 0, 0'] + [f'v_mov_b32 v{L_(qt)}, 0xff800000' for qt in range(3)]
    nleft = 3*LA
    for k in range(12):
        u = k // 3
        pos = (9 + 2*u) - (16 - LA)
        early = max(0, 3*(pos+1) + 3) if pos >= 0 else 0
        for x in conv_list(k): vl.append((x, early))
        if k == 2:
            for x in misc: vl.append((x, 0))
    def vidx(k): return (k+1)*16 + (len(misc) if k >= 2 else 0)
    ml = []
    for p in range(LA):
        for qt in range(3): ml.append(dict(t=p1_mfma(p - LA, qt), need=0, wait=[('w', (p - LA) % 16)] if qt == 0 else None))
    korder = [0, 1, 2, 3, 4, 5, 6, 7]
    for f in korder:
        T, u = divmod(f, 4)
        for qt in range(3):
            c = '0' if u == 0 else vr(S_(qt, T))
            ml.append(dict(t=f'{MF} {vr(S_(qt, T))}, {vr(R_(f))}, {vr(Q_(qt, u))}, {c}', need=vidx(u*3+qt) + 2 if T == 0 else 0, wait=[('k', f)] if qt == 0 else None))
    mx = []
    for qt in range(3): mx.append(f'v_max3_f32 v{L_(qt)}, v{L_(qt)}, v{S_(qt,0)}, v{S_(qt,0)+1}')
    for qt in range(3): mx.append(f'v_max3_f32 v{L_(qt)}, v{L_(qt)}, v{S_(qt,0)+2}, v{S_(qt,0)+3}')
    mx += g1.xreduce('v_max_f32', [L_(0), L_(1), L_(2)], [TMP, TMP+1, TMP+2])
    for r in range(4):
        for qt in range(3): mx.append(f'v_sub_f32 v{S_(qt,0)+r}, v{S_(qt,0)+r}, v{L_(qt)}')
    for r in range(4):
        for qt in range(3): mx.append(f'v_sub_f32 v{MN(qt)+r}, 0, v{L_(qt)}')
    for qt in range(3): mx.append(f'v_mov_b32 v{L_(qt)}, 0')
    nT0 = nleft + 12
    kr = {}
    for f in range(8):
        pos = f - (8 - LA)
        kr.setdefault(max(0, 3*(pos+1)), []).append(f)
    vi = 0
    for mi, m in enumerate(ml[:nT0]):
        for f in kr.get(mi, []): st.read(kread(f, 0), ('k', f))
        while vi < min(m['need'], len(vl)):
            assert vl[vi][1] <= mi, (vi, mi)
            a(vl[vi][0]); vi += 1
        if m['need'] > len(vl): a('s_nop 1')
        if m['wait']: st.wait(m['wait'])
        a(m['t'])
        for _ in range(2):
            if vi < len(vl) and vl[vi][1] <= mi + 1: a(vl[vi][0]); vi += 1
    assert vi == len(vl)
    a.label('L_reenter')
    xi = 0
    for j, m in enumerate(ml[nT0:]):
        if m['wait']: st.wait(m['wait'])
        a(m['t'])
        if j < 4: st.read(kread(j, 1), ('K', j))
        if j >= 3:
            for _ in range(3):
                if xi < len(mx): a(mx[xi]); xi += 1
    for f in (4, 5, 6): st.read(kread(f, 1), ('K', f))
    while xi < len(mx): a(mx[xi]); xi += 1
    sm0 = sm_gaps(0)
    t1sub = [f'v_add_f32 v{S_(qt,1)+r}, v{MN(qt)}, v{S_(qt,1)+r}' for qt in range(3) for r in range(4)]
    for gq in range(13, 48):
        for x in sm0[gq]: a(x)
        if gq % 2 == 1:
            assert t1sub or True
            if t1sub: a(t1sub.pop(0))
            else: a('s_nop 0')
    kx = [KUNIT[i] ^ KUNIT[i+1] for i in range(7)] + [0]
    vx = [VUNIT[i] ^ VUNIT[i+1] for i in range(7)] + [0]
    a(f's_mov_b32 s{sKS}, {pack4(kx):#x}'); a(f's_mov_b32 s{sVS}, {pack4(vx):#x}'); a(f's_mov_b32 s{sI}, 8')
    def half(hf):
        prev = sm_gaps(hf); cur = sm_gaps(1 - hf)
        for idx in range(48):
            f, qt = divmod(idx, 3)
            if f < 8:
                T, u = divmod(f, 4)
                c = vr(MN(qt)) if u == 0 else vr(S_(qt, T))
                a(f'{MF} {vr(S_(qt, T))}, {vr(R_(f))}, {vr(Q_(qt, u))}, {c}')
            else:
                v = f - 8
                a(f'{MF} {vr(O_(qt, v))}, {vr(R_(v))}, {vr(P_(hf, qt))}, {vr(O_(qt, v))}')
            if idx % 2 == 0:
                r = (idx + 14)//2
                if r < 8: st.read(kread(r, 1 - hf), ('K', r))
                elif r < 24: st.read(vread((r-8) >> 1, (r-8) & 1, hf), ('V', (r-8) >> 1))
                else: st.read(kread(r - 24, hf), ('K', r - 24))
            else:
                if idx == 1 and hf == 0: a('s_barrier')
                if (idx + 1) % 6 == 0:
                    f2 = ((idx + 1)//3 + 1) % 16
                    st.wait([('K', f2)] if f2 < 8 else [('V', f2 - 8)])
                if hf == 0 and idx == 3:
                    a(f's_and_b32 s{sKX}, s{sKS}, 15')
                if hf == 0 and idx == 7: a(f's_lshl_b32 s{sKX}, s{sKX}, 14')
                if hf == 0 and idx == 9: a(f's_lshr_b32 s{sKS}, s{sKS}, 4')
                if hf == 0 and idx == 13: a(f's_and_b32 s{sVX}, s{sVS}, 15')
                if hf == 0 and idx == 15: a(f's_lshl_b32 s{sVX}, s{sVX}, 14')
                if hf == 0 and idx == 19: a(f's_lshr_b32 s{sVS}, s{sVS}, 4')
                if hf == 0 and idx == 43: a(f's_sub_u32 s{sI}, s{sI}, 1')
                if hf == 0 and idx == 45: a(f's_cmp_eq_u32 s{sI}, 0')
            for x in prev.get(idx + 48, []) + cur.get(idx, []): a(x)
            if idx % 4 == 2:
                if hf == 0 and 10 <= idx <= 22:
                    u = (idx - 10)//4
                    a(f'v_xor_b32 v{AK+u}, s{sKX}, v{AK+u}')
                if hf == 1 and 10 <= idx <= 38:
                    v = (idx - 10)//4
                    a(f'v_xor_b32 v{AV+v}, s{sVX}, v{AV+v}')
    st.wait([('K', 1)])
    a.label('L_p2')
    half(0)
    a('s_cbranch_scc1 L_tail')
    q_exit = list(st.q)
    half(1)
    a('s_branch L_p2')
    a.label('L_tail')
    st2(a, cfg, 0)
    st.q = q_exit
    prev = sm_gaps(1)
    rest = [x for gq in range(48, 61) for x in prev[gq]]
    vrd = [(v, part) for v in range(8) for part in range(2)]
    for i, x in enumerate(rest):
        if i < len(vrd): st.read(vread(vrd[i][0], vrd[i][1], 1), ('V', vrd[i][0]))
        a(x)
    assert len(rest) >= len(vrd)
    fin = g1.xreduce('v_add_f32', [L_(0), L_(1), L_(2)], [TMP, TMP+1, TMP+2])
    fin += [f'v_max3_f32 v{TMP}, v{L_(0)}, v{L_(1)}, v{L_(2)}', f'v_add_f32 v{TMP+1}, v{L_(0)}, v{L_(1)}']
    fin += [f'v_rcp_f32 v{L_(qt)}, v{L_(qt)}' for qt in (0, 1)]
    fin += [f'v_cmp_nge_f32 vcc, s{sTHR}, v{TMP}', f'v_cmp_u_f32 s[{sMT}:{sMT+1}], v{TMP+1}, v{L_(2)}', f'v_rcp_f32 v{L_(2)}, v{L_(2)}']
    fin += [f'v_mbcnt_lo_u32_b32 v{lane}, -1, 0', f'v_mbcnt_hi_u32_b32 v{lane}, -1, v{lane}', f'v_lshlrev_b32 v{lane}, 4, v{lane}', f's_lshl_b32 s{sT2}, s{sHH}, 2', f's_add_u32 s{sT2}, s{sT2}, {FLAG_LDS}',
            f's_or_b64 vcc, vcc, s[{sMT}:{sMT+1}]', f's_cselect_b32 s{sT}, 1, 0', f's_andn2_b32 s{sT}, s{sT}, s{sREDO}', f'v_mov_b32 v{TMP}, s{sT2}', f'v_mov_b32 v{TMP+1}, s{sT}',
            f'ds_write_b32 v{TMP}, v{TMP+1}']
    def nrm(uu):
        l = []
        for qt in range(3):
            o0 = O_(qt, 2*uu)
            l += [f'v_mul_f32 v{o0+r}, v{o0+r}, v{L_(qt)}' for r in range(8)]
            l += [f'v_cvt_pk_bf16_f32 v{o0+r}, v{o0+2*r}, v{o0+2*r+1}' for r in range(4)]
            l += [f'buffer_store_dwordx4 {vr(o0)}, v{lane}, s[{SWS}:{SWS+3}], s{sOB+qt} offen offset:{uu*1024}{cfg.ost}']
        return l
    fl = [(x, 0) for x in fin]
    for uu in range(4): fl += [(x, 6*uu + 6 + 4) for x in nrm(uu)]
    fi = 0
    for idx in range(24):
        v, qt = divmod(idx, 3)
        if qt == 0: st.wait([('V', v)])
        a(f'{MF} {vr(O_(qt, v))}, {vr(R_(v))}, {vr(P_(1, qt))}, {vr(O_(qt, v))}')
        for _ in range(3):
            if fl[fi][1] <= idx + 1:
                a(fl[fi][0])
                if fl[fi][0].startswith('ds_write'): st.q.append(('fl',))
                fi += 1
        if idx == 21:
            assert fi >= len(fin)
            a('s_waitcnt lgkmcnt(0)')
            a('s_barrier')
            a(f'v_mov_b32 v192, {FLAG_LDS}')
            a(f'ds_read_b128 {vr(192)}, v192')
    while fi < len(fl): a(fl[fi][0]); fi += 1
    st2(a, cfg, 1)
    a('s_waitcnt lgkmcnt(0)')
    a('v_or3_b32 v192, v192, v193, v194')
    a('v_or_b32 v192, v192, v195')
    a('s_nop 0')
    a(f'v_readfirstlane_b32 s{sT}, v192')
    a('s_nop 0')
    a(f's_cmp_lg_u32 s{sT}, 0')
    a('s_cbranch_scc1 L_redo')
    vm = VM2()
    vm.issue(('st',))
    a(f'v_mov_b32 v{VL16}, v{lane}')
    Wrap.cur = None
    for r in range(cfg.nraw1): w_load(a, vm, r)
    op_consts2(a)
    a(f's_setprio {cfg.oprio}')
    vmwait(a, vm, lambda t: t == ('st',))
    st2(a, cfg, 2)
    a('s_barrier')
    st2(a, cfg, 3)
    for r in range(cfg.nraw1, 45): w_load(a, vm, r)
    oproj(a, cfg)
    a.label('L_redo')
    a(f's_mov_b32 s{sREDO}, 1')
    a(f's_lshl_b32 s{sT}, s{sB}, 5'); a(f's_add_u32 s{sT}, s{sT}, s{sH}'); a(f's_lshl_b32 s{sT}, s{sT}, 17')
    a(f's_add_u32 s{SK}, s6, s{sT}'); a(f's_addc_u32 s{SK+1}, s7, 0'); a(f's_mov_b32 s{SK+2}, 131072'); a(f's_mov_b32 s{SK+3}, 0x00020000')
    a('s_waitcnt vmcnt(0)')
    a('s_barrier')
    a(f'v_lshrrev_b32 v{lane}, 4, v{lane}')
    a(f'v_and_b32 v{TMP}, 15, v{lane}'); a(f'v_lshlrev_b32 v{TMP}, 8, v{TMP}')
    a(f'v_lshrrev_b32 v{TMP+1}, 4, v{lane}'); a(f'v_lshl_add_u32 v{TMP}, v{TMP+1}, 4, v{TMP}')
    for qt in range(3): a(f'v_mov_b32 v{L_(qt)}, 0xff800000')
    for r in range(0, 96, 2): a(f'v_pk_mov_b32 v[{r}:{r+1}], 0, 0')
    a(f's_mov_b32 s{sJ}, 0')
    a.label('L_redo_max')
    for u in range(4): a(f'buffer_load_dwordx4 {vr(R_(u))}, v{TMP}, s[{SK}:{SK+3}], s{sJ} offen offset:{u*64}')
    a('s_waitcnt vmcnt(0)')
    for u in range(4):
        for qt in range(3):
            c = '0' if u == 0 else vr(S_(qt, 0))
            a(f'{MF} {vr(S_(qt, 0))}, {vr(R_(u))}, {vr(Q_(qt, u))}, {c}')
    a('s_nop 7'); a('s_nop 7')
    for x in mx[:6]: a(x)
    a(f's_add_u32 s{sJ}, s{sJ}, 4096'); a(f's_cmp_lt_u32 s{sJ}, 131072'); a('s_cbranch_scc1 L_redo_max')
    for u in range(4): a(f'v_xor_b32 v{AK+u}, {(KUNIT[7] ^ KUNIT[0])*U}, v{AK+u}')
    for v in range(8): a(f'v_xor_b32 v{AV+v}, {(VUNIT[7] ^ VUNIT[0])*U}, v{AV+v}')
    a('s_barrier')
    for f in range(8): a(kread(f, 0))
    a('s_waitcnt lgkmcnt(0)')
    for m in ml[nleft:nT0]: a(m['t'])
    a('s_branch L_reenter')

def kernel_a(cfg):
    a = Asm()
    a('s_cmp_ge_u32 s2, 256'); a('s_cbranch_scc1 L_endA')
    a('s_load_dwordx8 s[4:11], s[0:1], 0')
    a('s_load_dwordx8 s[12:19], s[0:1], 32')
    a('v_lshrrev_b32 v2, 6, v0')
    a('v_and_b32 v1, 63, v0')
    a(f'v_readfirstlane_b32 s{sW}, v2')
    if cfg.stamps:
        a(f's_memrealtime s[{sMT}:{sMT+1}]'); a(f's_memtime s[{sMT+2}:{sMT+3}]'); a('s_waitcnt lgkmcnt(0)')
        a(f'v_mov_b32 v{STV}, 0')
        a(f'v_writelane_b32 v{STV}, s{sMT}, 62'); a(f'v_writelane_b32 v{STV}, s{sMT+2}, 60')
    a(f's_lshr_b32 s{sT}, s2, 3')
    if cfg.mapping == 0:
        a(f's_and_b32 s{sH}, s2, 7'); a(f's_lshl_b32 s{sH}, s{sH}, 2'); a(f's_and_b32 s{sT}, s{sT}, 3')
        a(f's_add_u32 s{sH}, s{sH}, s{sT}')
        a(f's_lshr_b32 s{sB}, s2, 5')
        a(f's_lshl_b32 s{sC}, s{sT}, 1'); a(f's_add_u32 s{sC}, s{sC}, s{sB}')
    elif cfg.mapping == 2:
        a(f's_and_b32 s{sB}, s2, 7'); a(f's_mov_b32 s{sH}, s{sT}')
        a(f's_mul_i32 s{sT2}, s{sT}, 57'); a(f's_lshr_b32 s{sT2}, s{sT2}, 9'); a(f's_mul_i32 s{sT2}, s{sT2}, 9'); a(f's_sub_u32 s{sC}, s{sT}, s{sT2}')
    else:
        a(f's_and_b32 s{sB}, s2, 1'); a(f's_lshl_b32 s{sB}, s{sB}, 2'); a(f's_and_b32 s{sT}, s{sT}, 3'); a(f's_add_u32 s{sB}, s{sB}, s{sT}')
        a(f's_and_b32 s{sH}, s2, 6'); a(f's_lshl_b32 s{sH}, s{sH}, 2'); a(f's_lshr_b32 s{sT2}, s2, 5'); a(f's_add_u32 s{sH}, s{sH}, s{sT2}')
        a(f's_lshl_b32 s{sC}, s{sT}, 1'); a(f's_add_u32 s{sC}, s{sC}, s{sT2}')
    a(f's_cmp_ge_u32 s{sC}, 9'); a(f's_cselect_b32 s{sT2}, 9, 0'); a(f's_sub_u32 s{sC}, s{sC}, s{sT2}')
    if cfg.rot1 == 0: a(f's_mov_b32 s{sC}, 0')
    if cfg.rot1 == 2: a(f's_and_b32 s{sC}, s{sC}, 1')
    if cfg.rot1 == 3: a(f's_and_b32 s{sC}, s{sC}, 1'); a(f's_mul_i32 s{sC}, s{sC}, 4')
    a(f's_and_b32 s{sHH}, s{sW}, 1')
    a(f's_mov_b32 s{sN}, 0')
    a(f's_cmp_ge_u32 s{sW}, 4'); a('s_cbranch_scc1 L_compute')
    a(f's_cmp_ge_u32 s{sW}, 2'); a('s_cbranch_scc1 L_hkv')
    helper_xw(a, cfg)
    a.label('L_hkv')
    vm = helper_kv(a, cfg)
    helper_p2(a, cfg, vm)
    a.label('L_compute')
    compute(a, cfg)
    a.label('L_endA')
    a('s_endpgm')
    return a.text()

def build(cfg):
    for j in cfg.nostg: STG.pop(j)
    if cfg.stg is not None: STG.clear(); STG.update(cfg.stg)
    ka = kernel_a(cfg)
    hazard.check(ka)
    return build_file([dict(name='standalone__mha_block_cached__near_ridge_kernel', body=ka, grid=256, block=512, lds=163840, vgpr=256, single=True)])

if __name__ == '__main__':
    cfg = Cfg()
    out = sys.argv[1]
    for kv in sys.argv[2:]:
        k, v = kv.split('=', 1)
        setattr(cfg, k, eval(v))
    open(out, 'w').write(build(cfg))
```
